```python
import torch

def _softmax(x, axis=-1):
    return torch.softmax(x, dim=axis)
def _gelu(x):
    return torch.nn.functional.gelu(x, approximate="tanh")
def _silu(x):
    return torch.nn.functional.silu(x)
def _sigmoid(x):
    return torch.sigmoid(x)
def _layernorm(x, axis=-1, eps=1e-5):
    m = x.mean(dim=axis, keepdim=True)
    v = x.var(dim=axis, keepdim=True, unbiased=False)
    return (x - m) / torch.sqrt(v + eps)
def _scatter_add(tgt, idx, src, axis=0):
    return tgt.clone().index_add_(axis, idx, src)
def _segment_sum(src, seg, n):
    out = torch.zeros((n,) + src.shape[1:], dtype=src.dtype)
    return out.index_add_(0, seg, src)
def _pad(x, pw):
    flat = tuple(v for pair in reversed(pw) for v in pair)
    return torch.nn.functional.pad(x, flat)

kernel_name = 'gated_mix__linear_attn_block__glu_gated_bilinear__prompt'

def setup_inputs():

    _w = (lambda a: (lambda t: t.to(torch.bfloat16) if t.is_floating_point() else t)(torch.as_tensor(a)))
    def _A_setup():
        B, S, D = 1, 2048, 1024
        return {
            "x": _w((lambda *s: torch.randn(*s, dtype=torch.bfloat16) * 0.05)(B, S, D)),
            "wqkv": _w((lambda *s: torch.randn(*s, dtype=torch.bfloat16) * 0.8)(D, 3 * D)),
            "wo": _w((lambda *s: torch.randn(*s, dtype=torch.bfloat16) * 0.05)(D, D)),
        }
    _A_in = _A_setup()

    def _B_setup():
        B, S, D, F = 1, 2048, 1024, 3584
        return {
            "x": _w((lambda *s: torch.randn(*s, dtype=torch.bfloat16) * 0.05)(B, S, D)),
            "w_gate": _w((lambda *s: torch.randn(*s, dtype=torch.bfloat16) * 1.6)(D, F) * (D ** -0.5)),
            "w_up": _w((lambda *s: torch.randn(*s, dtype=torch.bfloat16) * 1.6)(D, F) * (D ** -0.5)),
            "w_down": _w((lambda *s: torch.randn(*s, dtype=torch.bfloat16) * 1.6)(F, D) * (F ** -0.5)),
        }
    _B_in = _B_setup()

    return {
        "A_x": _A_in["x"],
        "A_wqkv": _A_in["wqkv"],
        "A_wo": _A_in["wo"],
        "B_x": _B_in["x"],
        "B_w_gate": _B_in["w_gate"],
        "B_w_up": _B_in["w_up"],
        "B_w_down": _B_in["w_down"],
        "gate_w": _w((lambda *s: torch.randn(*s, dtype=torch.bfloat16) * 0.05)(1024) * 16.0),
    }

def reference(A_x, A_wqkv, A_wo, B_x, B_w_gate, B_w_up, B_w_down, gate_w):
    def _A_ref(x, wqkv, wo):
        B, S, D = x.shape
        H = 32; Dh = D // H
        qkv = (lambda x, *d: x.permute(*d))((x @ wqkv).reshape(B, S, 3, H, Dh), 2, 0, 3, 1, 4)
        q, k, v = qkv[0], qkv[1], qkv[2]
        phi = lambda t: torch.where(t > 0, t + 1, torch.exp(t)) + 1e-6
        pq, pk = phi(q), phi(k)
        kv = torch.einsum("bhsd,bhse->bhde", pk, v)
        z = torch.einsum("bhsd->bhd", pk)
        num = torch.einsum("bhqd,bhde->bhqe", pq, kv)
        den = torch.einsum("bhqd,bhd->bhq", pq, z)[..., None] + 1e-6
        o = num / den
        return (lambda x, *d: x.permute(*d))(o, 0, 2, 1, 3).reshape(B, S, D) @ wo

    def _B_ref(x, w_gate, w_up, w_down):
        g = torch.einsum("bsd,df->bsf", x, w_gate)
        u = torch.einsum("bsd,df->bsf", x, w_up)
        h = g * u
        return torch.einsum("bsf,fd->bsd", h, w_down)

    x = A_x
    g = _sigmoid((x * gate_w).sum(-1, keepdims=True))
    a = _A_ref(x, A_wqkv, A_wo)
    b = _B_ref(x, B_w_gate, B_w_up, B_w_down)
    return g * a + (1 - g) * b
```

```python
class Asm:
    def __init__(self):
        self.lines = []
        self.uid = 0
    def __call__(self, s):
        for ln in s.split("\n"):
            ln = ln.strip()
            if ln:
                self.lines.append("    " + ln if not ln.endswith(":") else ln)
    def label(self, name):
        self.lines.append(name + ":")
    def new(self, p="L"):
        self.uid += 1
        return f"{p}_{self.uid}"
    def text(self):
        return "\n".join(self.lines) + "\n"

def vr(b, n):
    return f"v[{b}:{b+n-1}]" if n > 1 else f"v{b}"
def sr(b, n):
    return f"s[{b}:{b+n-1}]" if n > 1 else f"s{b}"

AH_OFF = 0
AH_LD = 4608 * 2
AH_BYTES = 2048 * AH_LD
KVP_OFF = AH_BYTES
KVP_BYTES = 32 * 8 * 24 * 64 * 4
G_OFF = KVP_OFF + KVP_BYTES
G_BYTES = 2048 * 4
P2_OFF = G_OFF + G_BYTES
P2_BYTES = 128 * 128 * 128 * 4
WS_USED = P2_OFF + P2_BYTES

def kd(name, vgpr, sgpr=102, accum=None):
    if accum is None:
        accum = (vgpr + 3) // 4 * 4
    return f""".amdhsa_kernel {name}
  .amdhsa_next_free_vgpr {vgpr}
  .amdhsa_next_free_sgpr {sgpr}
  .amdhsa_accum_offset {accum}
  .amdhsa_group_segment_fixed_size 0
  .amdhsa_kernarg_size 88
  .amdhsa_user_sgpr_count 2
  .amdhsa_user_sgpr_kernarg_segment_ptr 1
  .amdhsa_system_sgpr_workgroup_id_x 1
.end_amdhsa_kernel
"""
```

```python
from gen_common import *

STAGE = 36864
NST = 4
K1_LDS = STAGE * NST
GATE_R, UP_R, QKV_R = 16384, 23552, 30720
ACC = 96
def acc(tm, jj): return ACC + (jj * 4 + tm) * 4
AF = [32, 48]
BR = 64

def gen_k1(a: Asm, name="k1_kernel"):
    a(f""".globl {name}
.p2align 8
.type {name},@function""")
    a.label(name)
    a(f"""
    s_cmp_ge_u32 s2, 256
    s_cbranch_scc1 {name}_done
    s_load_dwordx4 s[68:71], s[0:1], 0      ; x, wqkv
    s_load_dwordx4 s[24:27], s[0:1], 32
    s_load_dwordx2 s[30:31], s[0:1], 56     ; gate_w
    s_load_dwordx4 s[32:35], s[0:1], 72
    v_and_b32 v1, 63, v0
    v_lshrrev_b32 v2, 6, v0
    s_nop 0
    v_readfirstlane_b32 s40, v2
    s_and_b32 s39, s2, 7
    s_lshl_b32 s39, s39, 2
    s_lshr_b32 s58, s2, 6
    s_add_u32 s39, s39, s58
    s_lshr_b32 s38, s2, 3
    s_and_b32 s38, s38, 7                   ; i
    s_and_b32 s41, s40, 3                   ; wm
    s_lshr_b32 s42, s40, 2                  ; wn
    s_waitcnt lgkmcnt(0)
    s_mov_b32 s28, s70
    s_mov_b32 s29, s71
    s_mov_b32 s4, s68
    s_mov_b32 s5, s69
    s_mov_b32 s6, 4194304
    s_mov_b32 s7, 0x00020000
    s_mov_b32 s20, s34
    s_mov_b32 s21, s35
    s_mov_b32 s22, {WS_USED}
    s_mov_b32 s23, 0x00020000
    s_mov_b32 s60, s32
    s_mov_b32 s61, s33
    s_mov_b32 s62, 256
    s_mov_b32 s63, 0x00020000
    s_mov_b32 s64, s30
    s_mov_b32 s65, s31
    s_mov_b32 s66, 2048
    s_mov_b32 s67, 0x00020000
    """)
    a("""
    v_lshrrev_b32 v2, 4, v1                 ; g = l>>4
    v_and_b32 v3, 3, v1                     ; q = l&3
    v_lshrrev_b32 v4, 2, v1
    v_and_b32 v4, 3, v4                     ; r = (l>>2)&3
    v_and_b32 v5, 15, v1                    ; l&15
    ; f(r): ((r1^r0)<<1)|r1
    v_lshrrev_b32 v6, 1, v4
    v_and_b32 v7, 1, v4
    v_xor_b32 v7, v7, v6
    v_lshlrev_b32 v7, 1, v7
    v_or_b32 v7, v7, v6                     ; f(r)
    v_xor_b32 v7, v7, v2                    ; g ^ f(r)
    v_lshlrev_b32 v7, 4, v7
    s_lshl_b32 s58, s41, 12
    v_lshlrev_b32 v13, 6, v5
    v_add_u32 v13, v13, v7
    v_add_u32 v13, s58, v13
    v_lshrrev_b32 v6, 1, v2
    v_and_b32 v7, 1, v2
    v_xor_b32 v7, v7, v6
    v_lshlrev_b32 v7, 1, v7
    v_or_b32 v7, v7, v6                     ; f(g)
    v_xor_b32 v7, v7, v3                    ; c = p ^ f(Q)
    v_lshlrev_b32 v7, 4, v7
    v_lshrrev_b32 v6, 2, v1
    v_lshlrev_b32 v6, 11, v6
    v_add_u32 v6, v6, v7
    s_lshl_b32 s58, s38, 19                 ; i*256*2048
    s_lshl_b32 s59, s40, 16                 ; w*32 rows*2048
    s_add_u32 s58, s58, s59
    v_add_u32 v8, s58, v6
    v_add_u32 v9, 0x8000, v8                ; +16 rows
    s_lshl_b32 s50, s40, 11
    s_add_u32 s51, s50, 1024
    v_lshrrev_b32 v6, 1, v2                 ; g1
    v_and_b32 v7, 1, v2                     ; g0
    v_lshlrev_b32 v15, 4, v6
    v_lshlrev_b32 v16, 2, v7
    v_add_u32 v15, v15, v16
    v_add_u32 v15, v15, v4
    v_mul_u32_u24 v15, 224, v15
    v_lshrrev_b32 v16, 1, v3
    v_lshlrev_b32 v16, 4, v16               ; (q>>1)*16
    v_and_b32 v17, 1, v3
    v_lshlrev_b32 v17, 3, v17               ; (q&1)*8
    v_add_u32 v16, v16, v17
    v_add_u32 v15, v15, v16
    v_lshlrev_b32 v17, 3, v2
    v_add_u32 v17, v17, v4
    v_mul_u32_u24 v17, 192, v17
    v_add_u32 v17, v17, v16
    v_lshlrev_b32 v18, 5, v7                ; 32*g0
    v_sub_u32 v19, v17, v18                 ; odd
    v_add_u32 v17, v17, v18                 ; even
    """)
    a("""
    s_mul_i32 s72, s40, 3
    s_lshl_b32 s73, s40, 1
    s_add_u32 s73, s73, 4
    s_cmp_lt_u32 s40, 4
    s_cselect_b32 s72, s72, s73             ; n_g base
    s_mul_i32 s74, s39, 224                 ; 224 j
    s_lshl_b32 s75, s39, 6                  ; 64 j
    """)
    for s in range(3):
        srd = 8 + 4 * s
        vo = 10 + s
        lq = a.new("slotq"); le = a.new("slote")
        a(f"""
    s_add_u32 s73, s72, {s}                 ; n_g
    s_lshl_b32 s{52+s}, s73, 10
    s_add_u32 s{52+s}, s{52+s}, {GATE_R}
    s_mov_b32 s{44+s}, 0
    s_mov_b32 s{srd+3}, 0x00020000
    s_cmp_lt_u32 s73, 14
    s_cbranch_scc0 {lq}
    s_cmp_lt_u32 s73, 7
    s_cselect_b32 s{srd}, s24, s26
    s_cselect_b32 s{srd+1}, s25, s27
    s_cselect_b32 s58, 0, 7
    s_sub_u32 s73, s73, s58
    s_mov_b32 s{srd+2}, 7340032
    s_mov_b32 s{47+s}, 229376
    s_lshl_b32 s73, s73, 6
    v_add_u32 v20, s73, v1                  ; slot
    v_mul_u32_u24 v21, 4682, v20
    v_lshrrev_b32 v21, 16, v21              ; rho
    v_mul_u32_u24 v22, 14, v21
    v_sub_u32 v22, v20, v22                 ; c
    v_and_b32 v23, 0x13, v21
    v_and_b32 v24, 4, v21
    v_lshlrev_b32 v24, 1, v24
    v_or_b32 v23, v23, v24
    v_and_b32 v24, 8, v21
    v_lshrrev_b32 v24, 1, v24
    v_or_b32 v23, v23, v24                  ; k
    v_mul_u32_u24 v23, 7168, v23
    v_lshlrev_b32 v22, 4, v22
    v_add_u32 v23, v23, v22
    v_add_u32 v{vo}, s74, v23
    s_branch {le}
{lq}:
    s_mov_b32 s{srd}, s28
    s_mov_b32 s{srd+1}, s29
    s_mov_b32 s{srd+2}, 6291456
    s_mov_b32 s{47+s}, 196608
    s_sub_u32 s73, s73, 14
    s_lshl_b32 s73, s73, 6
    v_add_u32 v20, s73, v1                  ; slot
    v_mul_u32_u24 v21, 5462, v20
    v_lshrrev_b32 v21, 16, v21              ; k
    v_mul_u32_u24 v22, 12, v21
    v_sub_u32 v22, v20, v22                 ; c'
    v_lshrrev_b32 v23, 3, v21
    v_and_b32 v23, 1, v23
    v_lshlrev_b32 v23, 1, v23
    v_xor_b32 v22, v22, v23                 ; c
    v_lshrrev_b32 v23, 2, v22               ; part
    v_lshlrev_b32 v23, 11, v23
    v_and_b32 v22, 3, v22
    v_lshlrev_b32 v22, 4, v22
    v_mul_u32_u24 v21, 6144, v21
    v_add_u32 v21, v21, v23
    v_add_u32 v21, v21, v22
    v_add_u32 v{vo}, s75, v21
{le}:
""")
    a("""
    s_mov_b32 s43, 0
    s_mov_b32 s55, 0
    """)

    def dma_instr(n):
        if n < 2:
            return [f"s_add_u32 m0, s55, s{50+n}", "s_nop 0",
                    f"buffer_load_dwordx4 v{8+n}, s[4:7], s43 offen lds"]
        s = n - 2
        L = [f"s_add_u32 m0, s55, s{52+s}", "s_nop 0",
             f"buffer_load_dwordx4 v{10+s}, s[{8+4*s}:{11+4*s}], s{44+s} offen lds"]
        if s == 2:
            lab = a.new("skip")
            L = [f"s_cmp_ge_u32 s40, 4", f"s_cbranch_scc1 {lab}"] + L + [f"{lab}:"]
        return L
    def dma_advance():
        return ["s_add_u32 s43, s43, 64", "s_add_u32 s44, s44, s47", "s_add_u32 s45, s45, s48",
                "s_add_u32 s46, s46, s49", f"s_add_u32 s55, s55, {STAGE}",
                f"s_cmp_eq_u32 s55, {STAGE*NST}", "s_cselect_b32 s55, 0, s55"]

    for st in range(3):
        for n in range(5):
            a("\n".join(dma_instr(n)))
        a("\n".join(dma_advance()))

    a(f"""
    s_lshl_b32 s58, s38, 8
    s_lshl_b32 s59, s39, 3
    s_add_u32 s58, s58, s59
    s_add_u32 s76, s58, s40                 ; row
    s_lshl_b32 s58, s76, 11
    v_lshlrev_b32 v20, 5, v1
    buffer_load_dwordx4 v[32:35], v20, s[4:7], s58 offen
    buffer_load_dwordx4 v[36:39], v20, s[4:7], s58 offen offset:16
    buffer_load_dwordx4 v[40:43], v20, s[64:67], 0 offen
    buffer_load_dwordx4 v[44:47], v20, s[64:67], 0 offen offset:16
    """)
    for r in range(ACC, 256):
        a(f"v_mov_b32 v{r}, 0")
    a("s_waitcnt vmcnt(0)")
    a("v_mov_b32 v24, 0")
    for d in range(8):
        a(f"""
    v_lshlrev_b32 v20, 16, v{32+d}
    v_and_b32 v21, 0xffff0000, v{32+d}
    v_lshlrev_b32 v22, 16, v{40+d}
    v_and_b32 v23, 0xffff0000, v{40+d}
    v_mul_f32 v20, v20, v22
    v_mul_f32 v21, v21, v23
    v_cvt_pk_bf16_f32 v20, v20, v21
    v_lshlrev_b32 v21, 16, v20
    v_and_b32 v20, 0xffff0000, v20
    v_add_f32 v24, v24, v21
    v_add_f32 v24, v24, v20
""")
    for off in (0x041F, 0x081F, 0x101F, 0x201F, 0x401F):
        a(f"""
    ds_swizzle_b32 v20, v24 offset:{off}
    s_waitcnt lgkmcnt(0)
    v_add_f32 v24, v24, v20
""")
    a(f"""
    s_nop 0
    v_readlane_b32 s58, v24, 32
    s_nop 1
    v_add_f32 v24, s58, v24
    v_cvt_pk_bf16_f32 v24, v24, v24
    v_lshlrev_b32 v24, 16, v24              ; bf16(sum)
    v_mul_f32 v24, 0xbfb8aa3b, v24          ; -log2e * s
    v_exp_f32 v24, v24
    s_nop 0
    v_add_f32 v24, 1.0, v24
    v_rcp_f32 v24, v24
    s_nop 0
    v_cvt_pk_bf16_f32 v24, v24, v24
    v_lshlrev_b32 v24, 16, v24
    s_lshl_b32 s58, s76, 2
    s_add_u32 s58, s58, {G_OFF}
    v_mov_b32 v20, 0
    s_mov_b64 s[78:79], exec
    s_mov_b64 exec, 1
    buffer_store_dword v24, v20, s[20:23], s58 offen
    s_mov_b64 exec, s[78:79]
    s_barrier
    s_mov_b32 s56, 0
    s_cmp_eq_u32 s42, 0
    s_cbranch_scc0 {name}_wn1
""")

    def frag_desc(wn):
        d = []
        if wn == 0:
            for t in range(5): d.append((16, GATE_R + 32 * t, 1792, 'T'))
            for t in range(5): d.append((16, UP_R + 32 * t, 1792, 'T'))
        else:
            for t in (5, 6): d.append((16, GATE_R + 32 * t, 1792, 'T'))
            for t in (5, 6): d.append((16, UP_R + 32 * t, 1792, 'T'))
            for t in range(6):
                d.append((18 if t % 2 == 0 else 20, QKV_R + 32 * t, 768, 'T' if t < 2 else 'N'))
        return d

    def set_addrs(wn):
        L = ["v_add_u32 v14, s56, v13", "v_add_u32 v16, s56, v15"]
        if wn == 1:
            L += ["v_add_u32 v18, s56, v17", "v_add_u32 v20, s56, v19"]
        L += [f"s_add_u32 s56, s56, {STAGE}", f"s_cmp_eq_u32 s56, {STAGE*NST}", "s_cselect_b32 s56, 0, s56"]
        return L
    def rd_b(desc, jj, slot):
        ar, off, sec, _ = desc[jj]
        b = BR + 4 * slot
        return [f"ds_read_b64_tr_b16 v[{b}:{b+1}], v{ar} offset:{off}",
                f"ds_read_b64_tr_b16 v[{b+2}:{b+3}], v{ar} offset:{off+sec}"]
    def rd_a(par):
        return [f"ds_read_b128 v[{AF[par]+4*tm}:{AF[par]+4*tm+3}], v14 offset:{1024*tm}" for tm in range(4)]

    def step(wn, par, dma, vm, barrier, pre):
        desc = frag_desc(wn)
        if vm is not None:
            a(f"s_waitcnt vmcnt({vm})")
        if barrier:
            a("s_barrier")
        for jj in range(10):
            slot = (jj + 2 * par) % 4
            if jj + 2 < 10:
                a("\n".join(rd_b(desc, jj + 2, (jj + 2 + 2 * par) % 4)))
                a("s_waitcnt lgkmcnt(4)")
            elif pre:
                npar = 1 - par
                if jj == 8:
                    a("\n".join(set_addrs(wn)))
                    a("\n".join(rd_a(npar)))
                    a("\n".join(rd_b(desc, 0, (0 + 2 * npar) % 4)))
                else:
                    a("\n".join(rd_b(desc, 1, (1 + 2 * npar) % 4)))
                a("s_waitcnt lgkmcnt(8)")
            else:
                a(f"s_waitcnt lgkmcnt({2 if jj == 8 else 0})")
            b = BR + 4 * slot
            for tm in range(4):
                c = acc(tm, jj); x = AF[par] + 4 * tm
                if desc[jj][3] == 'T':
                    a(f"v_mfma_f32_16x16x32_bf16 v[{c}:{c+3}], v[{b}:{b+3}], v[{x}:{x+3}], v[{c}:{c+3}]")
                else:
                    a(f"v_mfma_f32_16x16x32_bf16 v[{c}:{c+3}], v[{x}:{x+3}], v[{b}:{b+3}], v[{c}:{c+3}]")
            if dma and jj < 5:
                a("\n".join(dma_instr(jj)))
                if jj == 4:
                    a("\n".join(dma_advance()))

    def glu_store(wn, pairs):
        for tm in range(4):
            a(f"s_add_u32 s59, s80, {tm * 16 * AH_LD}")
            for (jg, ju, t) in pairs:
                G = acc(tm, jg); U = acc(tm, ju)
                tb = 24 + 8 * ((t + tm) % 4)
                a(f"""
    v_cvt_pk_bf16_f32 v{tb}, v{G}, v{G+1}
    v_cvt_pk_bf16_f32 v{tb+1}, v{G+2}, v{G+3}
    v_cvt_pk_bf16_f32 v{tb+2}, v{U}, v{U+1}
    v_cvt_pk_bf16_f32 v{tb+3}, v{U+2}, v{U+3}
    v_lshlrev_b32 v{tb+4}, 16, v{tb}
    v_lshlrev_b32 v{tb+5}, 16, v{tb+2}
    v_and_b32 v{tb}, 0xffff0000, v{tb}
    v_and_b32 v{tb+2}, 0xffff0000, v{tb+2}
    v_mul_f32 v{tb+4}, v{tb+4}, v{tb+5}
    v_mul_f32 v{tb}, v{tb}, v{tb+2}
    v_lshlrev_b32 v{tb+5}, 16, v{tb+1}
    v_lshlrev_b32 v{tb+2}, 16, v{tb+3}
    v_and_b32 v{tb+1}, 0xffff0000, v{tb+1}
    v_and_b32 v{tb+3}, 0xffff0000, v{tb+3}
    v_mul_f32 v{tb+5}, v{tb+5}, v{tb+2}
    v_mul_f32 v{tb+1}, v{tb+1}, v{tb+3}
    v_cvt_pk_bf16_f32 v{tb+6}, v{tb+4}, v{tb}
    v_cvt_pk_bf16_f32 v{tb+7}, v{tb+5}, v{tb+1}
    buffer_store_dwordx2 v[{tb+6}:{tb+7}], v21, s[20:23], s59 offen offset:{32*t}
""")

    def phi4(src, dst, t0):
        L = []
        for h in range(2):
            s0, s1 = src + 2 * h, src + 2 * h + 1
            L += [f"v_cvt_pk_bf16_f32 v{t0}, v{s0}, v{s1}",
                  f"v_lshlrev_b32 v{t0+1}, 16, v{t0}",
                  f"v_and_b32 v{t0}, 0xffff0000, v{t0}",
                  f"v_mul_f32 v{t0+2}, 0x3fb8aa3b, v{t0+1}",
                  f"v_mul_f32 v{t0+3}, 0x3fb8aa3b, v{t0}",
                  f"v_exp_f32 v{t0+2}, v{t0+2}",
                  f"v_exp_f32 v{t0+3}, v{t0+3}",
                  f"v_add_f32 v{t0+4}, 1.0, v{t0+1}",
                  f"v_add_f32 v{t0+5}, 1.0, v{t0}",
                  f"v_cmp_lt_f32 vcc, 0, v{t0+1}",
                  f"v_cmp_lt_f32 s[82:83], 0, v{t0}",
                  "s_nop 1",
                  f"v_cndmask_b32 v{t0+2}, v{t0+2}, v{t0+4}, vcc",
                  f"v_cndmask_b32 v{t0+3}, v{t0+3}, v{t0+5}, s[82:83]",
                  f"v_cvt_pk_bf16_f32 v{t0}, v{t0+2}, v{t0+3}",
                  f"v_lshlrev_b32 v{t0+1}, 16, v{t0}",
                  f"v_and_b32 v{t0}, 0xffff0000, v{t0}",
                  f"v_add_f32 v{t0+1}, 0x358637bd, v{t0+1}",
                  f"v_add_f32 v{t0}, 0x358637bd, v{t0}",
                  f"v_cvt_pk_bf16_f32 v{dst+h}, v{t0+1}, v{t0}"]
        return L

    for wn in (0, 1):
        if wn == 1:
            a.label(f"{name}_wn1")
        desc = frag_desc(wn)
        a("\n".join(set_addrs(wn)))
        a("\n".join(rd_a(0)))
        a("\n".join(rd_b(desc, 0, 0)))
        a("\n".join(rd_b(desc, 1, 1)))
        a("s_mov_b32 s57, 14")
        lp = f"{name}_loop{wn}"
        a.label(lp)
        step(wn, 0, True, 4, True, True)
        step(wn, 1, True, 4, True, True)
        a(f"""
    s_sub_u32 s57, s57, 1
    s_cmp_lg_u32 s57, 0
    s_cbranch_scc1 {lp}
""")
        step(wn, 0, True, 4, True, True)
        step(wn, 1, False, 4, True, True)
        step(wn, 0, False, 0, True, True)
        step(wn, 1, False, None, False, False)
        a(f"""
    s_nop 7
    s_nop 7
    s_barrier
    s_lshl_b32 s58, s38, 8
    s_lshl_b32 s59, s41, 6
    s_add_u32 s58, s58, s59
    s_mul_i32 s81, s58, {AH_LD}             ; (256i+64wm)*ld
    s_add_u32 s80, s81, s74
    s_add_u32 s80, s80, 2048                ; h base
    v_mul_u32_u24 v21, {AH_LD}, v5
    v_lshlrev_b32 v22, 3, v2
    v_add_u32 v21, v21, v22                 ; (l&15)*ld + 8g
""")
        if wn == 0:
            a("s_barrier")
            a("s_barrier")
            glu_store(0, [(t, 5 + t, t) for t in range(5)])
            a("s_barrier")
            a(f"s_branch {name}_done")
        else:
            a("v_mov_b32 v48, 0x3f803f80\nv_mov_b32 v49, 0x3f803f80\nv_mov_b32 v50, 0x3f803f80\nv_mov_b32 v51, 0x3f803f80")
            for r in range(56, 80):
                a(f"v_mov_b32 v{r}, 0")
            for pp in range(2):
                for dt in range(2):
                    for hh in range(2):
                        a("\n".join(phi4(acc(2 * pp + hh, 6 + dt), 32 + 4 * dt + 2 * hh, 80)))
                for et in range(2):
                    for hh in range(2):
                        s = acc(2 * pp + hh, 8 + et); d = 40 + 4 * et + 2 * hh
                        a(f"v_cvt_pk_bf16_f32 v{d}, v{s}, v{s+1}\nv_cvt_pk_bf16_f32 v{d+1}, v{s+2}, v{s+3}")
                a("s_nop 1")
                for dt in range(2):
                    for et in range(2):
                        c = 56 + 4 * (dt * 2 + et)
                        a(f"v_mfma_f32_16x16x32_bf16 v[{c}:{c+3}], v[{32+4*dt}:{35+4*dt}], v[{40+4*et}:{43+4*et}], v[{c}:{c+3}]")
                    c = 72 + 4 * dt
                    a(f"v_mfma_f32_16x16x32_bf16 v[{c}:{c+3}], v[{32+4*dt}:{35+4*dt}], v[48:51], v[{c}:{c+3}]")
                a("s_nop 7")
            a(f"""
    s_nop 3
    s_mul_i32 s58, s41, 6144
    v_lshlrev_b32 v22, 3, v1                ; lane*8
    v_add_u32 v23, s58, v22
""")
            for p in range(12):
                a(f"ds_write_b64 v23, v[{56+2*p}:{57+2*p}] offset:{512*p}")
            a(f"""
    s_waitcnt lgkmcnt(0)
    s_barrier                                ; B2
    s_mul_i32 s58, s41, 1536                ; 3 pairs * 512
    v_add_u32 v23, s58, v22
""")
            for p in range(3):
                for w in range(4):
                    a(f"ds_read_b64 v[{32+8*p+2*w}:{33+8*p+2*w}], v23 offset:{w*6144+512*p}")
            a(f"""
    s_lshl_b32 s58, s39, 3
    s_add_u32 s58, s58, s38
    s_mul_i32 s58, s58, 6144
    s_add_u32 s58, s58, {KVP_OFF}
    s_waitcnt lgkmcnt(0)
""")
            for p in range(3):
                b = 32 + 8 * p
                a(f"""
    v_add_f32 v{b}, v{b}, v{b+2}
    v_add_f32 v{b+1}, v{b+1}, v{b+3}
    v_add_f32 v{b+4}, v{b+4}, v{b+6}
    v_add_f32 v{b+5}, v{b+5}, v{b+7}
    v_add_f32 v{b}, v{b}, v{b+4}
    v_add_f32 v{b+1}, v{b+1}, v{b+5}
    buffer_store_dwordx2 v[{b}:{b+1}], v23, s[20:23], s58 offen offset:{512*p} sc1
""")
            lsk = a.new("nosig")
            a(f"""
    s_waitcnt vmcnt(0)
    s_barrier                                ; B3
    s_lshl_b32 s84, s39, 2
    v_mov_b32 v24, 1
    v_mov_b32 v25, 0
    s_cmp_lg_u32 s41, 0
    s_cbranch_scc1 {lsk}
    s_mov_b64 s[78:79], exec
    s_mov_b64 exec, 1
    buffer_atomic_add v24, v25, s[60:63], s84 offen sc1
    s_mov_b64 exec, s[78:79]
{lsk}:
""")
            glu_store(1, [(0, 2, 5), (1, 3, 6)])
            for tm in range(4):
                for dt in range(2):
                    a("\n".join(phi4(acc(tm, 4 + dt), 32 + 4 * tm + 2 * dt, 80)))
            lp2 = a.new("poll")
            a(f"""
    v_mov_b32 v25, 0
{lp2}:
    buffer_load_dword v24, v25, s[60:63], s84 offen sc1
    s_waitcnt vmcnt(0)
    v_readfirstlane_b32 s58, v24
    s_cmp_ge_u32 s58, 8
    s_cbranch_scc1 {lp2}_ok
    s_sleep 2
    s_branch {lp2}
{lp2}_ok:
    s_lshl_b32 s58, s39, 3
    s_mul_i32 s58, s58, 6144
    s_add_u32 s58, s58, {KVP_OFF}
""")
            for ii in range(8):
                for p in range(3):
                    b = 96 + (p * 8 + ii) * 2
                    a(f"buffer_load_dwordx2 v[{b}:{b+1}], v23, s[20:23], s58 offen offset:{512*p} sc1")
                if ii < 7:
                    a("s_add_u32 s58, s58, 6144")
            a("s_waitcnt vmcnt(0)")
            for p in range(3):
                b = 96 + p * 16
                for st in (8, 4, 2):
                    for k in range(0, st, 2):
                        a(f"v_add_f32 v{b+k}, v{b+k}, v{b+k+st}\nv_add_f32 v{b+k+1}, v{b+k+1}, v{b+k+st+1}")
                a(f"ds_write_b64 v23, v[{b}:{b+1}] offset:{512*p}")
            a("""
    s_waitcnt lgkmcnt(0)
    s_barrier                                ; B4
""")
            for p in range(12):
                a(f"ds_read_b64 v[{56+2*p}:{57+2*p}], v22 offset:{512*p}")
            a("s_waitcnt lgkmcnt(0)")
            for et in range(2):
                for dt in range(2):
                    s = 56 + 4 * (dt * 2 + et); d = 96 + 4 * et + 2 * dt
                    a(f"v_cvt_pk_bf16_f32 v{d}, v{s}, v{s+1}\nv_cvt_pk_bf16_f32 v{d+1}, v{s+2}, v{s+3}")
            for dt in range(2):
                s = 72 + 4 * dt; d = 104 + 2 * dt
                a(f"v_cvt_pk_bf16_f32 v{d}, v{s}, v{s+1}\nv_cvt_pk_bf16_f32 v{d+1}, v{s+2}, v{s+3}")
            a("s_add_u32 s80, s81, s75\ns_nop 0")
            for tm in range(4):
                for et in range(3):
                    c = 112 + 12 * tm + 4 * et
                    a(f"v_mfma_f32_16x16x32_bf16 v[{c}:{c+3}], v[{96+4*et}:{99+4*et}], v[{32+4*tm}:{35+4*tm}], 0")
            a("s_nop 7")
            for tm in range(4):
                a(f"s_add_u32 s59, s80, {tm * 16 * AH_LD}")
                dn = 112 + 12 * tm + 8
                a(f"""
    v_cvt_pk_bf16_f32 v24, v{dn}, v{dn}
    v_lshlrev_b32 v24, 16, v24
    v_add_f32 v24, 0x358637bd, v24
    v_cvt_pk_bf16_f32 v24, v24, v24
    v_lshlrev_b32 v24, 16, v24
    v_rcp_f32 v24, v24
""")
                for et in range(2):
                    c = 112 + 12 * tm + 4 * et
                    tb = 56 + 8 * et
                    a(f"""
    v_cvt_pk_bf16_f32 v{tb}, v{c}, v{c+1}
    v_cvt_pk_bf16_f32 v{tb+1}, v{c+2}, v{c+3}
    v_lshlrev_b32 v{tb+2}, 16, v{tb}
    v_and_b32 v{tb+3}, 0xffff0000, v{tb}
    v_lshlrev_b32 v{tb+4}, 16, v{tb+1}
    v_and_b32 v{tb+5}, 0xffff0000, v{tb+1}
    v_mul_f32 v{tb+2}, v{tb+2}, v24
    v_mul_f32 v{tb+3}, v{tb+3}, v24
    v_mul_f32 v{tb+4}, v{tb+4}, v24
    v_mul_f32 v{tb+5}, v{tb+5}, v24
    v_cvt_pk_bf16_f32 v{tb+6}, v{tb+2}, v{tb+3}
    v_cvt_pk_bf16_f32 v{tb+7}, v{tb+4}, v{tb+5}
    buffer_store_dwordx2 v[{tb+6}:{tb+7}], v21, s[20:23], s59 offen offset:{32*et}
""")
    a.label(f"{name}_done")
    a("s_endpgm")

if __name__ == "__main__":
    a = Asm()
    hdr = f"; @launch kernel=k1_kernel grid=(256,1,1) block=(512,1,1) lds={K1_LDS}\n"
    hdr += '.amdgcn_target "amdgcn-amd-amdhsa--gfx950"\n.text\n'
    gen_k1(a)
    txt = hdr + a.text() + '.section .rodata,"a"\n.p2align 6\n' + kd("k1_kernel", 256)
    open("k1.s", "w").write(txt)
```

```python
from gen_common import *

ST2 = 32768
NST2 = 4
K2_LDS = ST2 * NST2
ACCB, ACCA = 96, 160
def acc2(base, tm, tn): return base + (tm * 4 + tn) * 4

def gen_k2(a: Asm, name="k2_kernel"):
    a(f""".globl {name}
.p2align 8
.type {name},@function""")
    a.label(name)
    a(f"""
    s_cmp_ge_u32 s2, 256
    s_cbranch_scc1 {name}_done
    s_load_dwordx2 s[12:13], s[0:1], 16     ; wo
    s_load_dwordx2 s[14:15], s[0:1], 48     ; w_down
    s_load_dwordx4 s[28:31], s[0:1], 64
    s_load_dwordx2 s[32:33], s[0:1], 80     ; ws
    v_and_b32 v1, 63, v0
    v_lshrrev_b32 v2, 6, v0
    s_nop 0
    v_readfirstlane_b32 s40, v2
    s_and_b32 s58, s2, 7                    ; x
    s_lshr_b32 s59, s2, 3                   ; r
    s_lshr_b32 s38, s58, 1
    s_lshl_b32 s38, s38, 2
    s_and_b32 s60, s59, 3
    s_add_u32 s38, s38, s60                 ; mt
    s_and_b32 s39, s58, 1
    s_lshl_b32 s39, s39, 2
    s_lshr_b32 s60, s59, 2
    s_and_b32 s60, s60, 3
    s_add_u32 s39, s39, s60                 ; nt
    s_lshr_b32 s44, s59, 4
    s_xor_b32 s44, s44, 1
    s_lshr_b32 s43, s40, 2                  ; kg
    s_lshr_b32 s41, s40, 1
    s_and_b32 s41, s41, 1                   ; wm
    s_and_b32 s42, s40, 1                   ; wn
    s_waitcnt lgkmcnt(0)
    s_mov_b32 s4, s32
    s_mov_b32 s5, s33
    s_mov_b32 s6, {AH_BYTES}
    s_mov_b32 s7, 0x00020000
    s_mov_b32 s16, s28
    s_mov_b32 s17, s29
    s_mov_b32 s18, 4194304
    s_mov_b32 s19, 0x00020000
    s_mov_b32 s20, s32
    s_mov_b32 s21, s33
    s_mov_b32 s22, {WS_USED}
    s_mov_b32 s23, 0x00020000
    s_mov_b32 s24, s30
    s_mov_b32 s25, s31
    s_mov_b32 s26, 256
    s_mov_b32 s27, 0x00020000
    s_cmp_eq_u32 s44, 0
    s_cselect_b32 s8, s12, s14
    s_cselect_b32 s9, s13, s15
    s_mov_b32 s61, 2097152
    s_mov_b32 s62, 7340032
    s_cselect_b32 s10, s61, s62
    s_mov_b32 s11, 0x00020000
    s_cselect_b32 s47, 0, 36                ; tau
    s_cselect_b32 s45, 0, {36*128}
    s_cselect_b32 s46, 0, {20*131072}
    v_lshrrev_b32 v2, 4, v1                 ; g
    v_and_b32 v3, 3, v1                     ; q
    v_lshrrev_b32 v4, 2, v1
    v_and_b32 v4, 3, v4                     ; r
    v_and_b32 v5, 15, v1
    v_lshrrev_b32 v6, 1, v5
    s_lshl_b32 s58, s43, 2
    v_add_u32 v7, s58, v2
    v_xor_b32 v6, v6, v7
    v_lshlrev_b32 v6, 4, v6
    v_lshlrev_b32 v12, 7, v5
    v_add_u32 v12, v12, v6
    s_lshl_b32 s58, s41, 13
    v_add_u32 v12, s58, v12
    v_lshrrev_b32 v6, 3, v1
    v_lshrrev_b32 v7, 1, v6
    v_and_b32 v8, 7, v1
    v_xor_b32 v9, v8, v7
    v_xor_b32 v9, 4, v9
    v_xor_b32 v8, v8, v7
    v_lshlrev_b32 v8, 4, v8
    v_lshlrev_b32 v9, 4, v9
    v_mul_u32_u24 v6, {AH_LD}, v6
    s_lshl_b32 s58, s38, 7
    s_lshl_b32 s59, s40, 4
    s_add_u32 s58, s58, s59
    s_mul_i32 s58, s58, {AH_LD}             ; (128mt+16w)*ld
    v_add_u32 v6, s58, v6
    v_add_u32 v8, v8, v6
    v_add_u32 v9, v9, v6
    v_add_u32 v9, {8*AH_LD}, v9
    s_lshl_b32 s50, s40, 11
    s_add_u32 s51, s50, 1024
    s_add_u32 s52, s50, 16384
    s_add_u32 s53, s52, 1024
    s_and_b32 s58, s40, 1
    s_lshl_b32 s58, s58, 2
    v_or_b32 v6, s58, v2                    ; (row&3)|(bit<<2)
    v_lshlrev_b32 v6, 1, v6                 ; sigma
    v_xor_b32 v6, v6, v5                    ; c
    v_lshlrev_b32 v6, 4, v6
    v_lshlrev_b32 v7, 11, v2                ; (l>>4)*2048
    v_add_u32 v6, v6, v7
    s_lshl_b32 s58, s40, 14                 ; w*8 rows*2048
    s_lshl_b32 s59, s39, 8                  ; nt*256
    s_add_u32 s58, s58, s59
    v_add_u32 v10, s58, v6
    v_add_u32 v11, 0x2000, v10              ; +4 rows
    v_and_b32 v6, 1, v2
    v_lshlrev_b32 v6, 2, v6
    v_or_b32 v6, v6, v4                     ; s'
    v_lshlrev_b32 v7, 3, v2
    v_add_u32 v7, v7, v4
    s_lshl_b32 s58, s43, 5
    v_add_u32 v7, s58, v7                   ; row
    v_lshlrev_b32 v7, 8, v7
    v_lshrrev_b32 v22, 1, v3
    v_lshlrev_b32 v22, 4, v22
    v_and_b32 v23, 1, v3
    v_lshlrev_b32 v23, 3, v23
    v_add_u32 v7, v7, v22
    v_add_u32 v7, v7, v23
    v_add_u32 v7, 0x4000, v7
    s_lshl_b32 s58, s42, 2
    """)
    for tn in range(4):
        a(f"""
    s_add_u32 s59, s58, {tn}
    v_xor_b32 v22, s59, v6
    v_lshlrev_b32 v22, 5, v22
    v_add_u32 v{14+tn}, v7, v22
""")
    a("s_mov_b32 s55, 0\ns_mov_b32 s56, 0")

    def dma_instr(n):
        if n < 2:
            return [f"s_add_u32 m0, s55, s{50+n}", "s_nop 0",
                    f"buffer_load_dwordx4 v{8+n}, s[4:7], s45 offen lds"]
        return [f"s_add_u32 m0, s55, s{50+n}", "s_nop 0",
                f"buffer_load_dwordx4 v{8+n}, s[8:11], s46 offen lds"]
    def dma_advance():
        return ["s_add_u32 s45, s45, 128", "s_add_u32 s46, s46, 131072", "s_add_u32 s47, s47, 1",
                "s_cmp_eq_u32 s47, 16", "s_cselect_b32 s8, s14, s8", "s_cselect_b32 s9, s15, s9",
                "s_cselect_b32 s10, s62, s10", "s_cselect_b32 s46, 0, s46",
                f"s_add_u32 s55, s55, {ST2}", f"s_cmp_eq_u32 s55, {ST2*NST2}", "s_cselect_b32 s55, 0, s55"]
    def set_addrs():
        return ["v_add_u32 v13, s56, v12"] + [f"v_add_u32 v{18+t}, s56, v{14+t}" for t in range(4)] + \
               [f"s_add_u32 s56, s56, {ST2}", f"s_cmp_eq_u32 s56, {ST2*NST2}", "s_cselect_b32 s56, 0, s56"]
    def reads(par):
        A = 32 + 32 * par; B = A + 16
        L = []
        for i in range(4):
            L.append(f"ds_read_b128 v[{A+4*i}:{A+4*i+3}], v13 offset:{2048*i}")
            L.append(f"ds_read_b64_tr_b16 v[{B+4*i}:{B+4*i+1}], v{18+i}")
            L.append(f"ds_read_b64_tr_b16 v[{B+4*i+2}:{B+4*i+3}], v{18+i} offset:1024")
        return L

    for st in range(3):
        for n in range(4):
            a("\n".join(dma_instr(n)))
        a("\n".join(dma_advance()))
    for r in range(ACCB, ACCA + 64):
        a(f"v_mov_b32 v{r}, 0")
    a("s_waitcnt vmcnt(8)\ns_barrier")
    a("\n".join(set_addrs()))
    a("\n".join(reads(0)))

    def step(accb, par, dma, vm, barrier, pre):
        a("s_waitcnt lgkmcnt(0)")
        if vm is not None:
            a(f"s_waitcnt vmcnt({vm})")
        if barrier:
            a("s_barrier")
        fill = []
        if pre:
            a("\n".join(set_addrs()))
            fill += [[x] for x in reads(1 - par)]
        if dma:
            d = [dma_instr(n) for n in range(4)]
            d[3] = d[3] + dma_advance()
            fill += d
        A = 32 + 32 * par; B = A + 16
        m = 0
        for tm in range(4):
            for tn in range(4):
                c = acc2(accb, tm, tn)
                a(f"v_mfma_f32_16x16x32_bf16 v[{c}:{c+3}], v[{B+4*tn}:{B+4*tn+3}], v[{A+4*tm}:{A+4*tm+3}], v[{c}:{c+3}]")
                if m < len(fill):
                    a("\n".join(fill[m]))
                m += 1

    a(f"""
    s_cmp_eq_u32 s44, 1
    s_mov_b32 s57, 16
    s_cbranch_scc1 {name}_phB
    s_mov_b32 s57, 8
""")
    a.label(f"{name}_loopA")
    step(ACCA, 0, True, 4, True, True)
    step(ACCA, 1, True, 4, True, True)
    a(f"""
    s_sub_u32 s57, s57, 1
    s_cmp_lg_u32 s57, 0
    s_cbranch_scc1 {name}_loopA
    s_mov_b32 s57, 8
""")
    a.label(f"{name}_phB")
    step(ACCB, 0, True, 4, True, True)
    step(ACCB, 1, True, 4, True, True)
    a(f"""
    s_sub_u32 s57, s57, 1
    s_cmp_lg_u32 s57, 0
    s_cbranch_scc1 {name}_phB
""")
    step(ACCB, 0, True, 4, True, True)
    step(ACCB, 1, False, 4, True, True)
    step(ACCB, 0, False, 0, True, True)
    step(ACCB, 1, False, None, False, False)
    a(f"""
    s_nop 7
    s_nop 7
    s_barrier
    v_lshlrev_b32 v22, 4, v1                ; lane*16
    s_lshl_b32 s58, s40, 14                 ; w*16384
    v_add_u32 v23, s58, v22
    s_xor_b32 s59, s40, 4
    s_lshl_b32 s59, s59, 14
    v_add_u32 v24, s59, v22
    s_lshl_b32 s63, s38, 3
    s_add_u32 s63, s63, s39
    s_lshl_b32 s64, s63, 16                 ; tile*65536
    s_lshl_b32 s59, s40, 13
    s_add_u32 s64, s64, s59
    s_add_u32 s64, s64, {P2_OFF}
    s_lshr_b32 s65, s63, 5
    s_lshl_b32 s65, s65, 2
    s_and_b32 s66, s63, 31
    s_lshl_b32 s66, 1, s66
    s_cmp_eq_u32 s43, 0
    s_cbranch_scc0 {name}_kg1
""")
    for kg in range(2):
        if kg == 1:
            a.label(f"{name}_kg1")
        keep = (0, 1) if kg == 0 else (2, 3)
        give = (2, 3) if kg == 0 else (0, 1)
        q = 0
        for base in (ACCB, ACCA):
            for tm in give:
                for tn in range(4):
                    c = acc2(base, tm, tn)
                    a(f"ds_write_b128 v23, v[{c}:{c+3}] offset:{1024*q}")
                    q += 1
        a("s_waitcnt lgkmcnt(0)\ns_barrier")
        q = 0
        for base in (ACCB, ACCA):
            for tm in give:
                for tn in range(4):
                    c = acc2(base, tm, tn)
                    a(f"ds_read_b128 v[{c}:{c+3}], v24 offset:{1024*q}")
                    q += 1
        a("s_waitcnt lgkmcnt(0)")
        for base in (ACCB, ACCA):
            for x in range(2):
                for tn in range(4):
                    c = acc2(base, keep[x], tn); d = acc2(base, give[x], tn)
                    for r in range(4):
                        a(f"v_add_f32 v{c+r}, v{c+r}, v{d+r}")
        lcons = a.new("cons")
        a(f"s_cmp_eq_u32 s44, 0\ns_cbranch_scc1 {lcons}")
        q = 0
        for tm in keep:
            for tn in range(4):
                c = acc2(ACCB, tm, tn)
                a(f"buffer_store_dwordx4 v[{c}:{c+3}], v22, s[20:23], s64 offen offset:{1024*(q%4)} sc1")
                q += 1
                if q == 4:
                    a("s_add_u32 s64, s64, 4096")
        lns = a.new("nosig")
        a(f"""
    s_waitcnt vmcnt(0)
    s_barrier
    s_cmp_lg_u32 s40, 0
    s_cbranch_scc1 {name}_done
    v_mov_b32 v24, s66
    v_mov_b32 v25, 0
    s_mov_b64 exec, 1
    buffer_atomic_or v24, v25, s[24:27], s65 offen sc1
    s_branch {name}_done
{lcons}:
    v_mov_b32 v25, 0
    s_lshl_b32 s58, s38, 7
    s_lshl_b32 s59, s41, 6
    s_add_u32 s58, s58, s59
    s_add_u32 s58, s58, {keep[0]*16}
    s_lshl_b32 s59, s58, 2
    s_add_u32 s59, s59, {G_OFF}
    v_lshlrev_b32 v26, 2, v5
    buffer_load_dword v28, v26, s[20:23], s59 offen
    buffer_load_dword v29, v26, s[20:23], s59 offen offset:64
    s_lshl_b32 s67, s58, 11                 ; token*2048
    s_lshl_b32 s59, s39, 8
    s_add_u32 s67, s67, s59
    s_lshl_b32 s59, s42, 7
    s_add_u32 s67, s67, s59
    v_lshlrev_b32 v26, 11, v5
    v_lshlrev_b32 v27, 3, v2
    v_add_u32 v26, v26, v27                 ; (l&15)*2048 + 8g
""")
        lp = a.new("poll")
        a(f"""
{lp}:
    buffer_load_dword v24, v25, s[24:27], s65 offen sc1
    s_waitcnt vmcnt(0)
    v_readfirstlane_b32 s58, v24
    s_and_b32 s58, s58, s66
    s_cbranch_scc1 {lp}_ok
    s_sleep 2
    s_branch {lp}
{lp}_ok:
""")
        q = 0
        for tm in give:
            for tn in range(4):
                c = acc2(ACCB, tm, tn)
                a(f"buffer_load_dwordx4 v[{c}:{c+3}], v22, s[20:23], s64 offen offset:{1024*(q%4)} sc1")
                q += 1
                if q == 4:
                    a("s_add_u32 s64, s64, 4096")
        a("""
    v_sub_f32 v30, 1.0, v28
    v_sub_f32 v31, 1.0, v29
    v_cvt_pk_bf16_f32 v30, v30, v31
    v_and_b32 v31, 0xffff0000, v30
    v_lshlrev_b32 v30, 16, v30
    s_waitcnt vmcnt(0)
""")
        for x in range(2):
            if x == 1:
                a("s_add_u32 s67, s67, 32768")
            for tn in range(4):
                cb = acc2(ACCB, keep[x], tn); cp = acc2(ACCB, give[x], tn); ca = acc2(ACCA, keep[x], tn)
                tb = 32 + 16 * (tn % 4)
                for r in range(4):
                    a(f"v_add_f32 v{cb+r}, v{cb+r}, v{cp+r}")
                a(f"""
    v_cvt_pk_bf16_f32 v{tb}, v{ca}, v{ca+1}
    v_cvt_pk_bf16_f32 v{tb+1}, v{ca+2}, v{ca+3}
    v_cvt_pk_bf16_f32 v{tb+2}, v{cb}, v{cb+1}
    v_cvt_pk_bf16_f32 v{tb+3}, v{cb+2}, v{cb+3}
    v_lshlrev_b32 v{tb+4}, 16, v{tb}
    v_and_b32 v{tb+5}, 0xffff0000, v{tb}
    v_lshlrev_b32 v{tb+6}, 16, v{tb+1}
    v_and_b32 v{tb+7}, 0xffff0000, v{tb+1}
    v_lshlrev_b32 v{tb+8}, 16, v{tb+2}
    v_and_b32 v{tb+9}, 0xffff0000, v{tb+2}
    v_lshlrev_b32 v{tb+10}, 16, v{tb+3}
    v_and_b32 v{tb+11}, 0xffff0000, v{tb+3}
    v_mul_f32 v{tb+4}, v{28+x}, v{tb+4}
    v_mul_f32 v{tb+5}, v{28+x}, v{tb+5}
    v_mul_f32 v{tb+6}, v{28+x}, v{tb+6}
    v_mul_f32 v{tb+7}, v{28+x}, v{tb+7}
    v_mul_f32 v{tb+8}, v{30+x}, v{tb+8}
    v_mul_f32 v{tb+9}, v{30+x}, v{tb+9}
    v_mul_f32 v{tb+10}, v{30+x}, v{tb+10}
    v_mul_f32 v{tb+11}, v{30+x}, v{tb+11}
    v_cvt_pk_bf16_f32 v{tb}, v{tb+4}, v{tb+5}
    v_cvt_pk_bf16_f32 v{tb+1}, v{tb+6}, v{tb+7}
    v_cvt_pk_bf16_f32 v{tb+2}, v{tb+8}, v{tb+9}
    v_cvt_pk_bf16_f32 v{tb+3}, v{tb+10}, v{tb+11}
    v_lshlrev_b32 v{tb+4}, 16, v{tb}
    v_and_b32 v{tb+5}, 0xffff0000, v{tb}
    v_lshlrev_b32 v{tb+6}, 16, v{tb+1}
    v_and_b32 v{tb+7}, 0xffff0000, v{tb+1}
    v_lshlrev_b32 v{tb+8}, 16, v{tb+2}
    v_and_b32 v{tb+9}, 0xffff0000, v{tb+2}
    v_lshlrev_b32 v{tb+10}, 16, v{tb+3}
    v_and_b32 v{tb+11}, 0xffff0000, v{tb+3}
    v_add_f32 v{tb+4}, v{tb+4}, v{tb+8}
    v_add_f32 v{tb+5}, v{tb+5}, v{tb+9}
    v_add_f32 v{tb+6}, v{tb+6}, v{tb+10}
    v_add_f32 v{tb+7}, v{tb+7}, v{tb+11}
    v_cvt_pk_bf16_f32 v{tb+12}, v{tb+4}, v{tb+5}
    v_cvt_pk_bf16_f32 v{tb+13}, v{tb+6}, v{tb+7}
    buffer_store_dwordx2 v[{tb+12}:{tb+13}], v26, s[16:19], s67 offen offset:{32*tn}
""")
        a(f"s_branch {name}_done")
    a.label(f"{name}_done")
    a("s_endpgm")
```

```python
from gen_common import *
import gen_k1, gen_k2, sys
HDR = open("gated_mix__linear_attn_block__glu_gated_bilinear__prompt.s.ref").read().split("; Override launch")[0]
a = Asm()
hdr = HDR
hdr += f"; @launch kernel=k1_kernel grid=(256,1,1) block=(512,1,1) lds={gen_k1.K1_LDS}\n"
hdr += f"; @launch kernel=k2_kernel grid=(256,1,1) block=(512,1,1) lds={gen_k2.K2_LDS}\n"
hdr += '.amdgcn_target "amdgcn-amd-amdhsa--gfx950"\n.text\n'
gen_k1.gen_k1(a)
gen_k2.gen_k2(a)
txt = hdr + a.text() + '.section .rodata,"a"\n.p2align 6\n' + kd("k1_kernel", 256) + ".p2align 6\n" + kd("k2_kernel", 228)
out = sys.argv[1] if len(sys.argv) > 1 else "gated_mix__linear_attn_block__glu_gated_bilinear__prompt.s"
open(out, "w").write(txt)
```

```python
class Asm:
    def __init__(self):
        self.lines = []
        self.uid = 0
    def __call__(self, s):
        for ln in s.split("\n"):
            ln = ln.strip()
            if ln:
                self.lines.append("    " + ln if not ln.endswith(":") else ln)
    def label(self, name):
        self.lines.append(name + ":")
    def new(self, p="L"):
        self.uid += 1
        return f"{p}_{self.uid}"
    def text(self):
        return "\n".join(self.lines) + "\n"

def vr(b, n):
    return f"v[{b}:{b+n-1}]" if n > 1 else f"v{b}"
def sr(b, n):
    return f"s[{b}:{b+n-1}]" if n > 1 else f"s{b}"

AH_OFF = 0
AH_LD = 4608 * 2
AH_BYTES = 2048 * AH_LD
KVP_OFF = AH_BYTES
KVP_BYTES = 32 * 8 * 24 * 64 * 4
G_OFF = KVP_OFF + KVP_BYTES
G_BYTES = 2048 * 4
P2_OFF = G_OFF + G_BYTES
P2_BYTES = 128 * 128 * 128 * 4
WS_USED = P2_OFF + P2_BYTES

def kd(name, vgpr, sgpr=102, accum=None):
    if accum is None:
        accum = (vgpr + 3) // 4 * 4
    return f""".amdhsa_kernel {name}
  .amdhsa_next_free_vgpr {vgpr}
  .amdhsa_next_free_sgpr {sgpr}
  .amdhsa_accum_offset {accum}
  .amdhsa_group_segment_fixed_size 0
  .amdhsa_kernarg_size 88
  .amdhsa_user_sgpr_count 2
  .amdhsa_user_sgpr_kernarg_segment_ptr 1
  .amdhsa_system_sgpr_workgroup_id_x 1
.end_amdhsa_kernel
"""

DIAG_OFF = 200 * 1024 * 1024
import os
DIAG = os.environ.get("DIAG", "0") == "1"
def stamp(a, i):
    if DIAG:
        if i == 6:
            a("s_memrealtime s[100:101]\ns_waitcnt lgkmcnt(0)")
            return
        if i == 0:
            a("s_memrealtime s[98:99]")
        a(f"s_memtime s[{86+2*i}:{87+2*i}]\ns_waitcnt lgkmcnt(0)")
def stamp_dump(a, n, wave_sreg, koff, ws_lo, ws_hi):
    if not DIAG: return
    stamp(a, 6)
    a("v_mov_b32 v5, s86\nv_mov_b32 v6, s98\nv_mov_b32 v7, s100")
    a(f"""
    s_mov_b32 s84, s{ws_lo}
    s_mov_b32 s85, s{ws_hi}
    s_mov_b32 s86, 0x10000000
    s_mov_b32 s87, 0x00020000
    s_lshl_b32 s58, s2, 3
    s_add_u32 s58, s58, s{wave_sreg}
    s_lshl_b32 s58, s58, 6
    s_add_u32 s58, s58, {DIAG_OFF + koff}
    v_mov_b32 v3, 0
    s_mov_b64 exec, 1
""")
    a("buffer_store_dword v5, v3, s[84:87], s58 offen")
    a("buffer_store_dword v6, v3, s[84:87], s58 offen offset:32")
    a("buffer_store_dword v7, v3, s[84:87], s58 offen offset:36")
    for i in range(1, n):
        a(f"v_mov_b32 v4, s{86+2*i}\nbuffer_store_dword v4, v3, s[84:87], s58 offen offset:{4*i}")
    a("s_waitcnt vmcnt(0)")
```

```python
from gen_common import *

STAGE = 36864
NST = 4
K1_LDS = STAGE * NST
GATE_R, UP_R, QKV_R = 16384, 23552, 30720
ACC = 96
def acc(tm, jj): return ACC + (jj * 4 + tm) * 4
AF = [32, 48]
BR = 64

def gen_k1(a: Asm, name="k1_kernel"):
    a(f""".globl {name}
.p2align 8
.type {name},@function""")
    a.label(name)
    a(f"""
    s_cmp_ge_u32 s2, 256
    s_cbranch_scc1 {name}_done
    s_load_dwordx4 s[68:71], s[0:1], 0      ; x, wqkv
    s_load_dwordx4 s[24:27], s[0:1], 32
    s_load_dwordx2 s[30:31], s[0:1], 56     ; gate_w
    s_load_dwordx4 s[32:35], s[0:1], 72
    v_and_b32 v1, 63, v0
    v_lshrrev_b32 v2, 6, v0
    s_nop 0
    v_readfirstlane_b32 s40, v2
    s_and_b32 s39, s2, 7
    s_lshl_b32 s39, s39, 2
    s_lshr_b32 s58, s2, 6
    s_add_u32 s39, s39, s58
    s_lshr_b32 s38, s2, 3
    s_and_b32 s38, s38, 7                   ; i
    s_and_b32 s41, s40, 3                   ; wm
    s_lshr_b32 s42, s40, 2                  ; wn
    s_waitcnt lgkmcnt(0)
    s_mov_b32 s28, s70
    s_mov_b32 s29, s71
    s_mov_b32 s4, s68
    s_mov_b32 s5, s69
    s_mov_b32 s6, 4194304
    s_mov_b32 s7, 0x00020000
    s_mov_b32 s20, s34
    s_mov_b32 s21, s35
    s_mov_b32 s22, {WS_USED}
    s_mov_b32 s23, 0x00020000
    s_mov_b32 s60, s32
    s_mov_b32 s61, s33
    s_mov_b32 s62, 256
    s_mov_b32 s63, 0x00020000
    s_mov_b32 s64, s30
    s_mov_b32 s65, s31
    s_mov_b32 s66, 2048
    s_mov_b32 s67, 0x00020000
    """)
    stamp(a, 0)
    a("""
    v_lshrrev_b32 v2, 4, v1                 ; g = l>>4
    v_and_b32 v3, 3, v1                     ; q = l&3
    v_lshrrev_b32 v4, 2, v1
    v_and_b32 v4, 3, v4                     ; r = (l>>2)&3
    v_and_b32 v5, 15, v1                    ; l&15
    ; f(r): ((r1^r0)<<1)|r1
    v_lshrrev_b32 v6, 1, v4
    v_and_b32 v7, 1, v4
    v_xor_b32 v7, v7, v6
    v_lshlrev_b32 v7, 1, v7
    v_or_b32 v7, v7, v6                     ; f(r)
    v_xor_b32 v7, v7, v2                    ; g ^ f(r)
    v_lshlrev_b32 v7, 4, v7
    s_lshl_b32 s58, s41, 12
    v_lshlrev_b32 v13, 6, v5
    v_add_u32 v13, v13, v7
    v_add_u32 v13, s58, v13
    v_lshrrev_b32 v6, 1, v2
    v_and_b32 v7, 1, v2
    v_xor_b32 v7, v7, v6
    v_lshlrev_b32 v7, 1, v7
    v_or_b32 v7, v7, v6                     ; f(g)
    v_xor_b32 v7, v7, v3                    ; c = p ^ f(Q)
    v_lshlrev_b32 v7, 4, v7
    v_lshrrev_b32 v6, 2, v1
    v_lshlrev_b32 v6, 11, v6
    v_add_u32 v6, v6, v7
    s_lshl_b32 s58, s38, 19                 ; i*256*2048
    s_lshl_b32 s59, s40, 16                 ; w*32 rows*2048
    s_add_u32 s58, s58, s59
    v_add_u32 v8, s58, v6
    v_add_u32 v9, 0x8000, v8                ; +16 rows
    s_lshl_b32 s50, s40, 11
    s_add_u32 s51, s50, 1024
    v_lshrrev_b32 v6, 1, v2                 ; g1
    v_and_b32 v7, 1, v2                     ; g0
    v_lshlrev_b32 v15, 4, v6
    v_lshlrev_b32 v16, 2, v7
    v_add_u32 v15, v15, v16
    v_add_u32 v15, v15, v4
    v_mul_u32_u24 v15, 224, v15
    v_lshrrev_b32 v16, 1, v3
    v_lshlrev_b32 v16, 4, v16               ; (q>>1)*16
    v_and_b32 v17, 1, v3
    v_lshlrev_b32 v17, 3, v17               ; (q&1)*8
    v_add_u32 v16, v16, v17
    v_add_u32 v15, v15, v16
    v_lshlrev_b32 v17, 3, v2
    v_add_u32 v17, v17, v4
    v_mul_u32_u24 v17, 192, v17
    v_add_u32 v17, v17, v16
    v_lshlrev_b32 v18, 5, v7                ; 32*g0
    v_sub_u32 v19, v17, v18                 ; odd
    v_add_u32 v17, v17, v18                 ; even
    """)
    a("""
    s_mul_i32 s72, s40, 3
    s_lshl_b32 s73, s40, 1
    s_add_u32 s73, s73, 4
    s_cmp_lt_u32 s40, 4
    s_cselect_b32 s72, s72, s73             ; n_g base
    s_mul_i32 s74, s39, 224                 ; 224 j
    s_lshl_b32 s75, s39, 6                  ; 64 j
    """)
    for s in range(3):
        srd = 8 + 4 * s
        vo = 10 + s
        lq = a.new("slotq"); le = a.new("slote")
        a(f"""
    s_add_u32 s73, s72, {s}                 ; n_g
    s_lshl_b32 s{52+s}, s73, 10
    s_add_u32 s{52+s}, s{52+s}, {GATE_R}
    s_mov_b32 s{44+s}, 0
    s_mov_b32 s{srd+3}, 0x00020000
    s_cmp_lt_u32 s73, 14
    s_cbranch_scc0 {lq}
    s_cmp_lt_u32 s73, 7
    s_cselect_b32 s{srd}, s24, s26
    s_cselect_b32 s{srd+1}, s25, s27
    s_cselect_b32 s58, 0, 7
    s_sub_u32 s73, s73, s58
    s_mov_b32 s{srd+2}, 7340032
    s_mov_b32 s{47+s}, 229376
    s_lshl_b32 s73, s73, 6
    v_add_u32 v20, s73, v1                  ; slot
    v_mul_u32_u24 v21, 4682, v20
    v_lshrrev_b32 v21, 16, v21              ; rho
    v_mul_u32_u24 v22, 14, v21
    v_sub_u32 v22, v20, v22                 ; c
    v_and_b32 v23, 0x13, v21
    v_and_b32 v24, 4, v21
    v_lshlrev_b32 v24, 1, v24
    v_or_b32 v23, v23, v24
    v_and_b32 v24, 8, v21
    v_lshrrev_b32 v24, 1, v24
    v_or_b32 v23, v23, v24                  ; k
    v_mul_u32_u24 v23, 7168, v23
    v_lshlrev_b32 v22, 4, v22
    v_add_u32 v23, v23, v22
    v_add_u32 v{vo}, s74, v23
    s_branch {le}
{lq}:
    s_mov_b32 s{srd}, s28
    s_mov_b32 s{srd+1}, s29
    s_mov_b32 s{srd+2}, 6291456
    s_mov_b32 s{47+s}, 196608
    s_sub_u32 s73, s73, 14
    s_lshl_b32 s73, s73, 6
    v_add_u32 v20, s73, v1                  ; slot
    v_mul_u32_u24 v21, 5462, v20
    v_lshrrev_b32 v21, 16, v21              ; k
    v_mul_u32_u24 v22, 12, v21
    v_sub_u32 v22, v20, v22                 ; c'
    v_lshrrev_b32 v23, 3, v21
    v_and_b32 v23, 1, v23
    v_lshlrev_b32 v23, 1, v23
    v_xor_b32 v22, v22, v23                 ; c
    v_lshrrev_b32 v23, 2, v22               ; part
    v_lshlrev_b32 v23, 11, v23
    v_and_b32 v22, 3, v22
    v_lshlrev_b32 v22, 4, v22
    v_mul_u32_u24 v21, 6144, v21
    v_add_u32 v21, v21, v23
    v_add_u32 v21, v21, v22
    v_add_u32 v{vo}, s75, v21
{le}:
""")
    a("""
    s_mov_b32 s43, 0
    s_mov_b32 s55, 0
    """)

    def dma_instr(n):
        if n < 2:
            return [f"s_add_u32 m0, s55, s{50+n}", "s_nop 0",
                    f"buffer_load_dwordx4 v{8+n}, s[4:7], s43 offen lds"]
        s = n - 2
        L = [f"s_add_u32 m0, s55, s{52+s}", "s_nop 0",
             f"buffer_load_dwordx4 v{10+s}, s[{8+4*s}:{11+4*s}], s{44+s} offen lds"]
        if s == 2:
            lab = a.new("skip")
            L = [f"s_cmp_ge_u32 s40, 4", f"s_cbranch_scc1 {lab}"] + L + [f"{lab}:"]
        return L
    def dma_advance():
        return ["s_add_u32 s43, s43, 64", "s_add_u32 s44, s44, s47", "s_add_u32 s45, s45, s48",
                "s_add_u32 s46, s46, s49", f"s_add_u32 s55, s55, {STAGE}",
                f"s_cmp_eq_u32 s55, {STAGE*NST}", "s_cselect_b32 s55, 0, s55"]

    for st in range(3):
        for n in range(5):
            a("\n".join(dma_instr(n)))
        a("\n".join(dma_advance()))

    for r in range(ACC, 256):
        a(f"v_mov_b32 v{r}, 0")
    a(f"""
    s_waitcnt vmcnt(8)
    s_barrier
    s_mov_b32 s56, 0
    s_cmp_eq_u32 s42, 0
    s_cbranch_scc0 {name}_wn1
""")

    def gate_loads(rr):
        b = 56 + 16 * rr
        a(f"""
    s_lshl_b32 s58, s38, 8
    s_lshl_b32 s59, s39, 3
    s_add_u32 s58, s58, s59
    s_lshl_b32 s59, s41, 1
    s_add_u32 s58, s58, s59
    s_add_u32 s{76+rr}, s58, {rr}           ; row
    s_lshl_b32 s58, s{76+rr}, 11
    v_lshlrev_b32 v20, 5, v1
    buffer_load_dwordx4 v[{b}:{b+3}], v20, s[4:7], s58 offen
    buffer_load_dwordx4 v[{b+4}:{b+7}], v20, s[4:7], s58 offen offset:16
""")
        if rr == 0:
            a("""
    buffer_load_dwordx4 v[88:91], v20, s[64:67], 0 offen
    buffer_load_dwordx4 v[92:95], v20, s[64:67], 0 offen offset:16
""")
    def gate_compute(rr):
        b = 56 + 16 * rr
        a("v_mov_b32 v24, 0")
        for d in range(8):
            a(f"""
    v_lshlrev_b32 v25, 16, v{b+d}
    v_and_b32 v26, 0xffff0000, v{b+d}
    v_lshlrev_b32 v27, 16, v{88+d}
    v_and_b32 v28, 0xffff0000, v{88+d}
    v_mul_f32 v25, v25, v27
    v_mul_f32 v26, v26, v28
    v_cvt_pk_bf16_f32 v25, v25, v26
    v_lshlrev_b32 v26, 16, v25
    v_and_b32 v25, 0xffff0000, v25
    v_add_f32 v24, v24, v26
    v_add_f32 v24, v24, v25
""")
        for off in (0x041F, 0x081F, 0x101F, 0x201F, 0x401F):
            a(f"""
    ds_swizzle_b32 v25, v24 offset:{off}
    s_waitcnt lgkmcnt(0)
    v_add_f32 v24, v24, v25
""")
        a(f"""
    s_nop 0
    v_readlane_b32 s58, v24, 32
    s_nop 1
    v_add_f32 v24, s58, v24
    v_cvt_pk_bf16_f32 v24, v24, v24
    v_lshlrev_b32 v24, 16, v24              ; bf16(sum)
    v_mul_f32 v24, 0xbfb8aa3b, v24          ; -log2e * s
    v_exp_f32 v24, v24
    s_nop 0
    v_add_f32 v24, 1.0, v24
    v_rcp_f32 v24, v24
    s_nop 0
    v_cvt_pk_bf16_f32 v24, v24, v24
    v_lshlrev_b32 v24, 16, v24
    s_lshl_b32 s58, s{76+rr}, 2
    s_add_u32 s58, s58, {G_OFF}
    v_mov_b32 v25, 0
    s_mov_b64 s[78:79], exec
    s_mov_b64 exec, 1
    buffer_store_dword v24, v25, s[20:23], s58 offen
    s_mov_b64 exec, s[78:79]
""")

    def frag_desc(wn):
        d = []
        if wn == 0:
            for t in range(5): d.append((16, GATE_R + 32 * t, 1792, 'T'))
            for t in range(5): d.append((16, UP_R + 32 * t, 1792, 'T'))
        else:
            for t in (5, 6): d.append((16, GATE_R + 32 * t, 1792, 'T'))
            for t in (5, 6): d.append((16, UP_R + 32 * t, 1792, 'T'))
            for t in range(6):
                d.append((18 if t % 2 == 0 else 20, QKV_R + 32 * t, 768, 'T' if t < 2 else 'N'))
        return d

    def set_addrs(wn):
        L = ["v_add_u32 v14, s56, v13", "v_add_u32 v16, s56, v15"]
        if wn == 1:
            L += ["v_add_u32 v18, s56, v17", "v_add_u32 v20, s56, v19"]
        L += [f"s_add_u32 s56, s56, {STAGE}", f"s_cmp_eq_u32 s56, {STAGE*NST}", "s_cselect_b32 s56, 0, s56"]
        return L
    def rd_b(desc, jj, slot):
        ar, off, sec, _ = desc[jj]
        b = BR + 4 * slot
        return [f"ds_read_b64_tr_b16 v[{b}:{b+1}], v{ar} offset:{off}",
                f"ds_read_b64_tr_b16 v[{b+2}:{b+3}], v{ar} offset:{off+sec}"]
    def rd_a(par):
        return [f"ds_read_b128 v[{AF[par]+4*tm}:{AF[par]+4*tm+3}], v14 offset:{1024*tm}" for tm in range(4)]

    def step(wn, par, dma, vm, barrier, pre):
        desc = frag_desc(wn)
        if vm is not None:
            a(f"s_waitcnt vmcnt({vm})")
        if barrier:
            a("s_barrier")
        for jj in range(10):
            slot = (jj + 2 * par) % 4
            if jj + 2 < 10:
                a("\n".join(rd_b(desc, jj + 2, (jj + 2 + 2 * par) % 4)))
                a("s_waitcnt lgkmcnt(4)")
            elif pre:
                npar = 1 - par
                if jj == 8:
                    a("\n".join(set_addrs(wn)))
                    a("\n".join(rd_a(npar)))
                    a("\n".join(rd_b(desc, 0, (0 + 2 * npar) % 4)))
                else:
                    a("\n".join(rd_b(desc, 1, (1 + 2 * npar) % 4)))
                a("s_waitcnt lgkmcnt(8)")
            else:
                a(f"s_waitcnt lgkmcnt({2 if jj == 8 else 0})")
            b = BR + 4 * slot
            for tm in range(4):
                c = acc(tm, jj); x = AF[par] + 4 * tm
                if desc[jj][3] == 'T':
                    a(f"v_mfma_f32_16x16x32_bf16 v[{c}:{c+3}], v[{b}:{b+3}], v[{x}:{x+3}], v[{c}:{c+3}]")
                else:
                    a(f"v_mfma_f32_16x16x32_bf16 v[{c}:{c+3}], v[{x}:{x+3}], v[{b}:{b+3}], v[{c}:{c+3}]")
            if dma and jj < 5:
                a("\n".join(dma_instr(jj)))
                if jj == 4:
                    a("\n".join(dma_advance()))

    def glu_calc(G, U, tb, d):
        a(f"""
    v_cvt_pk_bf16_f32 v{tb}, v{G}, v{G+1}
    v_cvt_pk_bf16_f32 v{tb+1}, v{G+2}, v{G+3}
    v_cvt_pk_bf16_f32 v{tb+2}, v{U}, v{U+1}
    v_cvt_pk_bf16_f32 v{tb+3}, v{U+2}, v{U+3}
    v_lshlrev_b32 v{tb+4}, 16, v{tb}
    v_lshlrev_b32 v{tb+5}, 16, v{tb+2}
    v_and_b32 v{tb}, 0xffff0000, v{tb}
    v_and_b32 v{tb+2}, 0xffff0000, v{tb+2}
    v_mul_f32 v{tb+4}, v{tb+4}, v{tb+5}
    v_mul_f32 v{tb}, v{tb}, v{tb+2}
    v_lshlrev_b32 v{tb+5}, 16, v{tb+1}
    v_lshlrev_b32 v{tb+2}, 16, v{tb+3}
    v_and_b32 v{tb+1}, 0xffff0000, v{tb+1}
    v_and_b32 v{tb+3}, 0xffff0000, v{tb+3}
    v_mul_f32 v{tb+5}, v{tb+5}, v{tb+2}
    v_mul_f32 v{tb+1}, v{tb+1}, v{tb+3}
    v_cvt_pk_bf16_f32 v{d}, v{tb+4}, v{tb}
    v_cvt_pk_bf16_f32 v{d+1}, v{tb+5}, v{tb+1}
""")
    rot = [0]
    def glu_store(wn, groups, tms):
        for tm in tms:
            a(f"s_add_u32 s59, s80, {tm * 16 * AH_LD}")
            for grp in groups:
                d = 32 + 4 * (rot[0] % 4); rot[0] += 1
                for x, (jg, ju, t) in enumerate(grp):
                    glu_calc(acc(tm, jg), acc(tm, ju), 24, d + 2 * x)
                t = grp[0][2]
                if len(grp) == 2:
                    a(f"""
    s_nop 1
    v_permlane16_swap_b32 v{d}, v{d+2}
    v_permlane16_swap_b32 v{d+1}, v{d+3}
    buffer_store_dwordx4 v[{d}:{d+3}], v19, s[20:23], s59 offen offset:{32*t}
""")
                else:
                    a(f"buffer_store_dwordx2 v[{d}:{d+1}], v21, s[20:23], s59 offen offset:{32*t}")

    def phi4(src, dst, t0):
        L = []
        for h in range(2):
            s0, s1 = src + 2 * h, src + 2 * h + 1
            L += [f"v_cvt_pk_bf16_f32 v{t0}, v{s0}, v{s1}",
                  f"v_lshlrev_b32 v{t0+1}, 16, v{t0}",
                  f"v_and_b32 v{t0}, 0xffff0000, v{t0}",
                  f"v_mul_f32 v{t0+2}, 0x3fb8aa3b, v{t0+1}",
                  f"v_mul_f32 v{t0+3}, 0x3fb8aa3b, v{t0}",
                  f"v_exp_f32 v{t0+2}, v{t0+2}",
                  f"v_exp_f32 v{t0+3}, v{t0+3}",
                  f"v_add_f32 v{t0+4}, 1.0, v{t0+1}",
                  f"v_add_f32 v{t0+5}, 1.0, v{t0}",
                  f"v_cmp_lt_f32 vcc, 0, v{t0+1}",
                  f"v_cmp_lt_f32 s[82:83], 0, v{t0}",
                  "s_nop 1",
                  f"v_cndmask_b32 v{t0+2}, v{t0+2}, v{t0+4}, vcc",
                  f"v_cndmask_b32 v{t0+3}, v{t0+3}, v{t0+5}, s[82:83]",
                  f"v_cvt_pk_bf16_f32 v{t0}, v{t0+2}, v{t0+3}",
                  f"v_lshlrev_b32 v{t0+1}, 16, v{t0}",
                  f"v_and_b32 v{t0}, 0xffff0000, v{t0}",
                  f"v_add_f32 v{t0+1}, 0x358637bd, v{t0+1}",
                  f"v_add_f32 v{t0}, 0x358637bd, v{t0}",
                  f"v_cvt_pk_bf16_f32 v{dst+h}, v{t0+1}, v{t0}"]
        return L

    for wn in (0, 1):
        if wn == 1:
            a.label(f"{name}_wn1")
        desc = frag_desc(wn)
        a("\n".join(set_addrs(wn)))
        a("\n".join(rd_a(0)))
        a("\n".join(rd_b(desc, 0, 0)))
        a("\n".join(rd_b(desc, 1, 1)))
        stamp(a, 1)
        a("s_mov_b32 s57, 14")
        lp = f"{name}_loop{wn}"
        a.label(lp)
        step(wn, 0, True, 4, True, True)
        step(wn, 1, True, 4, True, True)
        a(f"""
    s_sub_u32 s57, s57, 1
    s_cmp_lg_u32 s57, 0
    s_cbranch_scc1 {lp}
""")
        step(wn, 0, True, 4, True, True)
        step(wn, 1, False, 4, True, True)
        step(wn, 0, False, 0, True, True)
        step(wn, 1, False, None, False, False)
        stamp(a, 2)
        a(f"""
    s_nop 7
    s_nop 7
    s_barrier
    s_lshl_b32 s58, s38, 8
    s_lshl_b32 s59, s41, 6
    s_add_u32 s58, s58, s59
    s_mul_i32 s81, s58, {AH_LD}             ; (256i+64wm)*ld
    s_add_u32 s80, s81, s74
    s_add_u32 s80, s80, 2048                ; h base
    v_mul_u32_u24 v21, {AH_LD}, v5
    v_lshlrev_b32 v22, 3, v2
    v_add_u32 v21, v21, v22                 ; (l&15)*ld + 8g
    v_mul_u32_u24 v19, {AH_LD}, v5
    v_and_b32 v22, 1, v2
    v_lshlrev_b32 v22, 5, v22
    v_add_u32 v19, v19, v22
    v_lshrrev_b32 v22, 1, v2
    v_lshlrev_b32 v22, 4, v22
    v_add_u32 v19, v19, v22                 ; (l&15)*ld + 32(g&1) + 16(g>>1)
""")
        if wn == 0:
            G0 = [[(0, 5, 0), (1, 6, 1)], [(2, 7, 2), (3, 8, 3)], [(4, 9, 4)]]
            gate_loads(0); gate_loads(1)
            glu_store(0, G0, [0])
            a("s_barrier")
            glu_store(0, G0, [1])
            a("s_barrier")
            glu_store(0, G0, [2, 3])
            a("s_waitcnt vmcnt(12)")
            gate_compute(0); gate_compute(1)
            stamp(a, 3)
            a("s_barrier")
            stamp(a, 4)
            a("s_waitcnt vmcnt(0)")
            stamp(a, 5)
            stamp_dump(a, 6, 40, 0, 34, 35)
            a(f"s_branch {name}_done")
        else:
            a("v_mov_b32 v48, 0x3f803f80\nv_mov_b32 v49, 0x3f803f80\nv_mov_b32 v50, 0x3f803f80\nv_mov_b32 v51, 0x3f803f80")
            for r in range(56, 80):
                a(f"v_mov_b32 v{r}, 0")
            for pp in range(2):
                for dt in range(2):
                    for hh in range(2):
                        a("\n".join(phi4(acc(2 * pp + hh, 6 + dt), 32 + 4 * dt + 2 * hh, 80)))
                for et in range(2):
                    for hh in range(2):
                        s = acc(2 * pp + hh, 8 + et); d = 40 + 4 * et + 2 * hh
                        a(f"v_cvt_pk_bf16_f32 v{d}, v{s}, v{s+1}\nv_cvt_pk_bf16_f32 v{d+1}, v{s+2}, v{s+3}")
                a("s_nop 1")
                for dt in range(2):
                    for et in range(2):
                        c = 56 + 4 * (dt * 2 + et)
                        a(f"v_mfma_f32_16x16x32_bf16 v[{c}:{c+3}], v[{32+4*dt}:{35+4*dt}], v[{40+4*et}:{43+4*et}], v[{c}:{c+3}]")
                    c = 72 + 4 * dt
                    a(f"v_mfma_f32_16x16x32_bf16 v[{c}:{c+3}], v[{32+4*dt}:{35+4*dt}], v[48:51], v[{c}:{c+3}]")
                a("s_nop 7")
            a(f"""
    s_nop 3
    s_mul_i32 s58, s41, 6144
    v_lshlrev_b32 v22, 3, v1                ; lane*8
    v_add_u32 v23, s58, v22
""")
            for p in range(12):
                a(f"ds_write_b64 v23, v[{56+2*p}:{57+2*p}] offset:{512*p}")
            a(f"""
    s_waitcnt lgkmcnt(0)
    s_barrier                                ; B2
    s_mul_i32 s58, s41, 1536                ; 3 pairs * 512
    v_add_u32 v23, s58, v22
""")
            for p in range(3):
                for w in range(4):
                    a(f"ds_read_b64 v[{32+8*p+2*w}:{33+8*p+2*w}], v23 offset:{w*6144+512*p}")
            a(f"""
    s_lshl_b32 s58, s39, 3
    s_add_u32 s58, s58, s38
    s_mul_i32 s58, s58, 6144
    s_add_u32 s58, s58, {KVP_OFF}
    s_waitcnt lgkmcnt(0)
""")
            for p in range(3):
                b = 32 + 8 * p
                a(f"""
    v_add_f32 v{b}, v{b}, v{b+2}
    v_add_f32 v{b+1}, v{b+1}, v{b+3}
    v_add_f32 v{b+4}, v{b+4}, v{b+6}
    v_add_f32 v{b+5}, v{b+5}, v{b+7}
    v_add_f32 v{b}, v{b}, v{b+4}
    v_add_f32 v{b+1}, v{b+1}, v{b+5}
    buffer_store_dwordx2 v[{b}:{b+1}], v23, s[20:23], s58 offen offset:{512*p} sc1
""")
            lsk = a.new("nosig")
            a(f"""
    s_waitcnt vmcnt(0)
    s_barrier                                ; B3
    s_lshl_b32 s84, s39, 2
    v_mov_b32 v24, 1
    v_mov_b32 v25, 0
    s_cmp_lg_u32 s41, 0
    s_cbranch_scc1 {lsk}
    s_mov_b64 s[78:79], exec
    s_mov_b64 exec, 1
    buffer_atomic_add v24, v25, s[60:63], s84 offen sc1
    s_mov_b64 exec, s[78:79]
{lsk}:
""")
            stamp(a, 3)
            glu_store(1, [[(0, 2, 5), (1, 3, 6)]], range(4))
            for tm in range(4):
                for dt in range(2):
                    a("\n".join(phi4(acc(tm, 4 + dt), 32 + 4 * tm + 2 * dt, 80)))
            lp2 = a.new("poll")
            a(f"""
    v_mov_b32 v25, 0
{lp2}:
    buffer_load_dword v24, v25, s[60:63], s84 offen sc1
    s_waitcnt vmcnt(0)
    v_readfirstlane_b32 s58, v24
    s_cmp_ge_u32 s58, 8
    s_cbranch_scc1 {lp2}_ok
    s_sleep 2
    s_branch {lp2}
{lp2}_ok:
""")
            stamp(a, 4)
            a(f"""
    s_lshl_b32 s58, s39, 3
    s_mul_i32 s58, s58, 6144
    s_add_u32 s58, s58, {KVP_OFF}
""")
            for ii in range(8):
                for p in range(3):
                    b = 96 + (p * 8 + ii) * 2
                    a(f"buffer_load_dwordx2 v[{b}:{b+1}], v23, s[20:23], s58 offen offset:{512*p} sc1")
                if ii < 7:
                    a("s_add_u32 s58, s58, 6144")
            a("s_waitcnt vmcnt(0)")
            for p in range(3):
                b = 96 + p * 16
                for st in (8, 4, 2):
                    for k in range(0, st, 2):
                        a(f"v_add_f32 v{b+k}, v{b+k}, v{b+k+st}\nv_add_f32 v{b+k+1}, v{b+k+1}, v{b+k+st+1}")
                a(f"ds_write_b64 v23, v[{b}:{b+1}] offset:{512*p}")
            a("""
    s_waitcnt lgkmcnt(0)
    s_barrier                                ; B4
""")
            for p in range(12):
                a(f"ds_read_b64 v[{56+2*p}:{57+2*p}], v22 offset:{512*p}")
            a("s_waitcnt lgkmcnt(0)")
            for et in range(2):
                for dt in range(2):
                    s = 56 + 4 * (dt * 2 + et); d = 96 + 4 * et + 2 * dt
                    a(f"v_cvt_pk_bf16_f32 v{d}, v{s}, v{s+1}\nv_cvt_pk_bf16_f32 v{d+1}, v{s+2}, v{s+3}")
            for dt in range(2):
                s = 72 + 4 * dt; d = 104 + 2 * dt
                a(f"v_cvt_pk_bf16_f32 v{d}, v{s}, v{s+1}\nv_cvt_pk_bf16_f32 v{d+1}, v{s+2}, v{s+3}")
            a("s_add_u32 s80, s81, s75\ns_nop 0")
            for tm in range(4):
                for et in range(3):
                    c = 112 + 12 * tm + 4 * et
                    a(f"v_mfma_f32_16x16x32_bf16 v[{c}:{c+3}], v[{96+4*et}:{99+4*et}], v[{32+4*tm}:{35+4*tm}], 0")
            a("s_nop 7")
            for tm in range(4):
                a(f"s_add_u32 s59, s80, {tm * 16 * AH_LD}")
                dn = 112 + 12 * tm + 8
                a(f"""
    v_cvt_pk_bf16_f32 v24, v{dn}, v{dn}
    v_lshlrev_b32 v24, 16, v24
    v_add_f32 v24, 0x358637bd, v24
    v_cvt_pk_bf16_f32 v24, v24, v24
    v_lshlrev_b32 v24, 16, v24
    v_rcp_f32 v24, v24
""")
                d = 72 + 4 * tm
                for et in range(2):
                    c = 112 + 12 * tm + 4 * et
                    tb = 56 + 8 * et
                    a(f"""
    v_cvt_pk_bf16_f32 v{tb}, v{c}, v{c+1}
    v_cvt_pk_bf16_f32 v{tb+1}, v{c+2}, v{c+3}
    v_lshlrev_b32 v{tb+2}, 16, v{tb}
    v_and_b32 v{tb+3}, 0xffff0000, v{tb}
    v_lshlrev_b32 v{tb+4}, 16, v{tb+1}
    v_and_b32 v{tb+5}, 0xffff0000, v{tb+1}
    v_mul_f32 v{tb+2}, v{tb+2}, v24
    v_mul_f32 v{tb+3}, v{tb+3}, v24
    v_mul_f32 v{tb+4}, v{tb+4}, v24
    v_mul_f32 v{tb+5}, v{tb+5}, v24
    v_cvt_pk_bf16_f32 v{d+2*et}, v{tb+2}, v{tb+3}
    v_cvt_pk_bf16_f32 v{d+2*et+1}, v{tb+4}, v{tb+5}
""")
                a(f"""
    s_nop 1
    v_permlane16_swap_b32 v{d}, v{d+2}
    v_permlane16_swap_b32 v{d+1}, v{d+3}
    buffer_store_dwordx4 v[{d}:{d+3}], v19, s[20:23], s59 offen
""")
    a("s_waitcnt vmcnt(0)")
    stamp(a, 5)
    stamp_dump(a, 6, 40, 0, 34, 35)
    a.label(f"{name}_done")
    a("s_endpgm")

if __name__ == "__main__":
    a = Asm()
    hdr = f"; @launch kernel=k1_kernel grid=(256,1,1) block=(512,1,1) lds={K1_LDS}\n"
    hdr += '.amdgcn_target "amdgcn-amd-amdhsa--gfx950"\n.text\n'
    gen_k1(a)
    txt = hdr + a.text() + '.section .rodata,"a"\n.p2align 6\n' + kd("k1_kernel", 256)
    open("k1.s", "w").write(txt)
```

```python
from gen_common import *
import os
NOMFMA = os.environ.get("K2_NOMFMA", "0") == "1"
NODMA = os.environ.get("K2_NODMA", "0") == "1"

ST2 = 32768
NST2 = 4
K2_LDS = ST2 * NST2
ACCB, ACCA = 96, 160
def acc2(base, tm, tn): return base + (tm * 4 + tn) * 4

def gen_k2(a: Asm, name="k2_kernel"):
    a(f""".globl {name}
.p2align 8
.type {name},@function""")
    a.label(name)
    a(f"""
    s_cmp_ge_u32 s2, {os.environ.get("K2_NWG", "256")}
    s_cbranch_scc1 {name}_done
    s_load_dwordx2 s[12:13], s[0:1], 16     ; wo
    s_load_dwordx2 s[14:15], s[0:1], 48     ; w_down
    s_load_dwordx4 s[28:31], s[0:1], 64
    s_load_dwordx2 s[32:33], s[0:1], 80     ; ws
    v_and_b32 v1, 63, v0
    v_lshrrev_b32 v2, 6, v0
    s_nop 0
    v_readfirstlane_b32 s40, v2
    """)
    code_touch(a, "k2_kernel_done", 40, 60, 224)
    a(f"""
    s_and_b32 s58, s2, 7                    ; x
    s_lshr_b32 s59, s2, 3                   ; r
    s_lshr_b32 s38, s58, 1
    s_lshl_b32 s38, s38, 2
    s_and_b32 s60, s59, 3
    s_add_u32 s38, s38, s60                 ; mt
    s_and_b32 s39, s58, 1
    s_lshl_b32 s39, s39, 2
    s_lshr_b32 s60, s59, 2
    s_and_b32 s60, s60, 3
    s_add_u32 s39, s39, s60                 ; nt
    s_lshr_b32 s44, s59, 4
    s_xor_b32 s44, s44, 1
    s_lshr_b32 s43, s40, 2                  ; kg
    s_lshr_b32 s41, s40, 1
    s_and_b32 s41, s41, 1                   ; wm
    s_and_b32 s42, s40, 1                   ; wn
    s_waitcnt lgkmcnt(0)
    s_mov_b32 s4, s32
    s_mov_b32 s5, s33
    s_mov_b32 s6, {AH_BYTES}
    s_mov_b32 s7, 0x00020000
    s_mov_b32 s16, s28
    s_mov_b32 s17, s29
    s_mov_b32 s18, 4194304
    s_mov_b32 s19, 0x00020000
    s_mov_b32 s20, s32
    s_mov_b32 s21, s33
    s_mov_b32 s22, {WS_USED}
    s_mov_b32 s23, 0x00020000
    s_mov_b32 s24, s30
    s_mov_b32 s25, s31
    s_mov_b32 s26, 256
    s_mov_b32 s27, 0x00020000
    s_cmp_eq_u32 s44, 0
    s_cselect_b32 s8, s12, s14
    s_cselect_b32 s9, s13, s15
    s_mov_b32 s61, 2097152
    s_mov_b32 s62, 7340032
    s_cselect_b32 s10, s61, s62
    s_mov_b32 s11, 0x00020000
    s_cselect_b32 s47, 0, 40                ; tau
    s_cselect_b32 s45, 0, {40*128}
    s_cselect_b32 s46, 0, {24*131072}
    v_lshrrev_b32 v2, 4, v1                 ; g
    v_and_b32 v3, 3, v1                     ; q
    v_lshrrev_b32 v4, 2, v1
    v_and_b32 v4, 3, v4                     ; r
    v_and_b32 v5, 15, v1
    v_lshrrev_b32 v6, 1, v5
    s_lshl_b32 s58, s43, 2
    v_add_u32 v7, s58, v2
    v_xor_b32 v6, v6, v7
    v_lshlrev_b32 v6, 4, v6
    v_lshlrev_b32 v12, 7, v5
    v_add_u32 v12, v12, v6
    s_lshl_b32 s58, s41, 13
    v_add_u32 v12, s58, v12
    v_lshrrev_b32 v6, 3, v1
    v_lshrrev_b32 v7, 1, v6
    v_and_b32 v8, 7, v1
    v_xor_b32 v9, v8, v7
    v_xor_b32 v9, 4, v9
    v_xor_b32 v8, v8, v7
    v_lshlrev_b32 v8, 4, v8
    v_lshlrev_b32 v9, 4, v9
    v_mul_u32_u24 v6, {AH_LD}, v6
    s_lshl_b32 s58, s38, 7
    s_lshl_b32 s59, s40, 4
    s_add_u32 s58, s58, s59
    s_mul_i32 s58, s58, {AH_LD}             ; (128mt+16w)*ld
    v_add_u32 v6, s58, v6
    v_add_u32 v8, v8, v6
    v_add_u32 v9, v9, v6
    v_add_u32 v9, {8*AH_LD}, v9
    s_lshl_b32 s50, s40, 11
    s_add_u32 s51, s50, 1024
    s_add_u32 s52, s50, 16384
    s_add_u32 s53, s52, 1024
    s_and_b32 s58, s40, 1
    s_lshl_b32 s58, s58, 2
    v_or_b32 v6, s58, v2                    ; (row&3)|(bit<<2)
    v_lshlrev_b32 v6, 1, v6                 ; sigma
    v_xor_b32 v6, v6, v5                    ; c
    v_lshlrev_b32 v6, 4, v6
    v_lshlrev_b32 v7, 11, v2                ; (l>>4)*2048
    v_add_u32 v6, v6, v7
    s_lshl_b32 s58, s40, 14                 ; w*8 rows*2048
    s_lshl_b32 s59, s39, 8                  ; nt*256
    s_add_u32 s58, s58, s59
    v_add_u32 v10, s58, v6
    v_add_u32 v11, 0x2000, v10              ; +4 rows
    v_and_b32 v6, 1, v2
    v_lshlrev_b32 v6, 2, v6
    v_or_b32 v6, v6, v4                     ; s'
    v_lshlrev_b32 v7, 3, v2
    v_add_u32 v7, v7, v4
    s_lshl_b32 s58, s43, 5
    v_add_u32 v7, s58, v7                   ; row
    v_lshlrev_b32 v7, 8, v7
    v_lshrrev_b32 v22, 1, v3
    v_lshlrev_b32 v22, 4, v22
    v_and_b32 v23, 1, v3
    v_lshlrev_b32 v23, 3, v23
    v_add_u32 v7, v7, v22
    v_add_u32 v7, v7, v23
    v_add_u32 v7, 0x4000, v7
    s_lshl_b32 s58, s42, 2
    """)
    stamp(a, 0)
    for tn in range(4):
        a(f"""
    s_add_u32 s59, s58, {tn}
    v_xor_b32 v22, s59, v6
    v_lshlrev_b32 v22, 5, v22
    v_add_u32 v{14+tn}, v7, v22
""")
    a("s_mov_b32 s55, 0\ns_mov_b32 s56, 0")

    def dma_instr(n):
        if os.environ.get("K2_VLOAD", "0") == "1":
            return [f"buffer_load_dwordx4 v[{96+4*n}:{99+4*n}], v{8+n}, s[{4 if n < 2 else 8}:{7 if n < 2 else 11}], s{45 if n < 2 else 46} offen"]
        if n < 2:
            return [f"s_add_u32 m0, s55, s{50+n}", "s_nop 0",
                    f"buffer_load_dwordx4 v{8+n}, s[4:7], s45 offen lds"]
        return [f"s_add_u32 m0, s55, s{50+n}", "s_nop 0",
                f"buffer_load_dwordx4 v{8+n}, s[8:11], s46 offen lds"]
    def dma_advance():
        return ["s_add_u32 s45, s45, 128", "s_add_u32 s46, s46, 131072", "s_add_u32 s47, s47, 1",
                "s_cmp_eq_u32 s47, 16", "s_cselect_b32 s8, s14, s8", "s_cselect_b32 s9, s15, s9",
                "s_cselect_b32 s10, s62, s10", "s_cselect_b32 s46, 0, s46",
                f"s_add_u32 s55, s55, {ST2}", f"s_cmp_eq_u32 s55, {ST2*NST2}", "s_cselect_b32 s55, 0, s55"]
    def set_addrs():
        return ["v_add_u32 v13, s56, v12"] + [f"v_add_u32 v{18+t}, s56, v{14+t}" for t in range(4)] + \
               [f"s_add_u32 s56, s56, {ST2}", f"s_cmp_eq_u32 s56, {ST2*NST2}", "s_cselect_b32 s56, 0, s56"]
    def reads(par):
        A = 32 + 32 * par; B = A + 16
        L = []
        for i in range(4):
            L.append(f"ds_read_b128 v[{A+4*i}:{A+4*i+3}], v13 offset:{2048*i}")
            L.append(f"ds_read_b64_tr_b16 v[{B+4*i}:{B+4*i+1}], v{18+i}")
            L.append(f"ds_read_b64_tr_b16 v[{B+4*i+2}:{B+4*i+3}], v{18+i} offset:1024")
        return L

    for st in range(3):
        for n in range(4):
            a("\n".join(dma_instr(n)))
        a("\n".join(dma_advance()))
    for r in range(ACCB, ACCA + 64):
        a(f"v_mov_b32 v{r}, 0")
    a("s_waitcnt vmcnt(8)\ns_barrier")
    a("\n".join(set_addrs()))
    a("\n".join(reads(0)))

    def step(accb, par, dma, vm, barrier, pre):
        a("s_waitcnt lgkmcnt(0)")
        if vm is not None:
            vmx = int(os.environ.get("K2_VM", "4")) if vm == 4 else vm
            a(f"s_waitcnt vmcnt({vmx})")
        if barrier:
            a("s_barrier")
        fill = []
        if pre:
            a("\n".join(set_addrs()))
            if os.environ.get("K2_NOREAD", "0") != "1":
                fill += [[x] for x in reads(1 - par)]
        if dma and not NODMA:
            d = [dma_instr(n) for n in range(4)]
            d[3] = d[3] + dma_advance()
            fill += d
        A = 32 + 32 * par; B = A + 16
        m = 0
        for tm in range(4):
            for tn in range(4):
                c = acc2(accb, tm, tn)
                if not NOMFMA:
                    a(f"v_mfma_f32_16x16x32_bf16 v[{c}:{c+3}], v[{B+4*tn}:{B+4*tn+3}], v[{A+4*tm}:{A+4*tm+3}], v[{c}:{c+3}]")
                if m < len(fill):
                    a("\n".join(fill[m]))
                m += 1

    stamp(a, 1)
    a(f"""
    s_cmp_eq_u32 s44, 1
    s_mov_b32 s57, 14
    s_cbranch_scc1 {name}_phB
    s_mov_b32 s57, 8
""")
    a.label(f"{name}_loopA")
    step(ACCA, 0, True, 4, True, True)
    step(ACCA, 1, True, 4, True, True)
    a(f"""
    s_sub_u32 s57, s57, 1
    s_cmp_lg_u32 s57, 0
    s_cbranch_scc1 {name}_loopA
    s_mov_b32 s57, 10
""")
    a.label(f"{name}_phB")
    step(ACCB, 0, True, 4, True, True)
    step(ACCB, 1, True, 4, True, True)
    a(f"""
    s_sub_u32 s57, s57, 1
    s_cmp_lg_u32 s57, 0
    s_cbranch_scc1 {name}_phB
""")
    step(ACCB, 0, True, 4, True, True)
    step(ACCB, 1, False, 4, True, True)
    step(ACCB, 0, False, 0, True, True)
    step(ACCB, 1, False, None, False, False)
    stamp(a, 2)
    if os.environ.get("K2_EXP", "0") == "1":
        a("s_waitcnt vmcnt(0)")
        stamp(a, 3); stamp(a, 4); stamp(a, 5)
        stamp_dump(a, 6, 40, 1 << 20, 32, 33)
        a(f"s_branch {name}_done")
    a(f"""
    s_nop 7
    s_nop 7
    s_barrier
    v_lshlrev_b32 v22, 4, v1                ; lane*16
    s_lshl_b32 s58, s40, 14                 ; w*16384
    v_add_u32 v23, s58, v22
    s_xor_b32 s59, s40, 4
    s_lshl_b32 s59, s59, 14
    v_add_u32 v24, s59, v22
    s_lshl_b32 s63, s38, 3
    s_add_u32 s63, s63, s39
    s_lshl_b32 s64, s63, 16                 ; tile*65536
    s_lshl_b32 s59, s40, 13
    s_add_u32 s64, s64, s59
    s_add_u32 s64, s64, {P2_OFF}
    s_lshr_b32 s65, s63, 5
    s_lshl_b32 s65, s65, 2
    s_and_b32 s66, s63, 31
    s_lshl_b32 s66, 1, s66
    s_cmp_eq_u32 s43, 0
    s_cbranch_scc0 {name}_kg1
""")
    for kg in range(2):
        if kg == 1:
            a.label(f"{name}_kg1")
        keep = (0, 1) if kg == 0 else (2, 3)
        give = (2, 3) if kg == 0 else (0, 1)
        q = 0
        for base in (ACCB, ACCA):
            for tm in give:
                for tn in range(4):
                    c = acc2(base, tm, tn)
                    a(f"ds_write_b128 v23, v[{c}:{c+3}] offset:{1024*q}")
                    q += 1
        a("s_waitcnt lgkmcnt(0)\ns_barrier")
        q = 0
        for base in (ACCB, ACCA):
            for tm in give:
                for tn in range(4):
                    c = acc2(base, tm, tn)
                    a(f"ds_read_b128 v[{c}:{c+3}], v24 offset:{1024*q}")
                    q += 1
        a("s_waitcnt lgkmcnt(0)")
        for base in (ACCB, ACCA):
            for x in range(2):
                for tn in range(4):
                    c = acc2(base, keep[x], tn); d = acc2(base, give[x], tn)
                    for r in range(4):
                        a(f"v_add_f32 v{c+r}, v{c+r}, v{d+r}")
        lcons = a.new("cons")
        a(f"s_cmp_eq_u32 s44, 0\ns_cbranch_scc1 {lcons}")
        q = 0
        for tm in keep:
            for tn in range(4):
                c = acc2(ACCB, tm, tn)
                a(f"buffer_store_dwordx4 v[{c}:{c+3}], v22, s[20:23], s64 offen offset:{1024*(q%4)} sc1")
                q += 1
                if q == 4:
                    a("s_add_u32 s64, s64, 4096")
        lns = a.new("nosig")
        a(f"""
    s_waitcnt vmcnt(0)
    s_barrier
    s_cmp_lg_u32 s40, 0
    s_cbranch_scc1 {name}_done
    v_mov_b32 v24, s66
    v_mov_b32 v25, 0
    s_mov_b64 exec, 1
    buffer_atomic_or v24, v25, s[24:27], s65 offen sc1
    s_branch {name}_done
{lcons}:
    v_mov_b32 v25, 0
    s_lshl_b32 s58, s38, 7
    s_lshl_b32 s59, s41, 6
    s_add_u32 s58, s58, s59
    s_add_u32 s58, s58, {keep[0]*16}
    s_lshl_b32 s59, s58, 2
    s_add_u32 s59, s59, {G_OFF}
    v_lshlrev_b32 v26, 2, v5
    buffer_load_dword v28, v26, s[20:23], s59 offen
    buffer_load_dword v29, v26, s[20:23], s59 offen offset:64
    s_lshl_b32 s67, s58, 11                 ; token*2048
    s_lshl_b32 s59, s39, 8
    s_add_u32 s67, s67, s59
    s_lshl_b32 s59, s42, 7
    s_add_u32 s67, s67, s59
    v_lshlrev_b32 v26, 11, v5
    v_and_b32 v27, 1, v2
    v_lshlrev_b32 v27, 5, v27
    v_add_u32 v26, v26, v27
    v_lshrrev_b32 v27, 1, v2
    v_lshlrev_b32 v27, 4, v27
    v_add_u32 v26, v26, v27                 ; (l&15)*2048 + 32(g&1) + 16(g>>1)
""")
        lp = a.new("poll")
        stamp(a, 3)
        a(f"""
{lp}:
    buffer_load_dword v24, v25, s[24:27], s65 offen sc1
    s_waitcnt vmcnt(0)
    v_readfirstlane_b32 s58, v24
    s_and_b32 s58, s58, s66
    s_cbranch_scc1 {lp}_ok
    s_sleep 2
    s_branch {lp}
{lp}_ok:
""")
        stamp(a, 4)
        q = 0
        for tm in give:
            for tn in range(4):
                c = acc2(ACCB, tm, tn)
                a(f"buffer_load_dwordx4 v[{c}:{c+3}], v22, s[20:23], s64 offen offset:{1024*(q%4)} sc1")
                q += 1
                if q == 4:
                    a("s_add_u32 s64, s64, 4096")
        a("""
    v_sub_f32 v30, 1.0, v28
    v_sub_f32 v31, 1.0, v29
    v_cvt_pk_bf16_f32 v30, v30, v31
    v_and_b32 v31, 0xffff0000, v30
    v_lshlrev_b32 v30, 16, v30
    s_waitcnt vmcnt(0)
""")
        for x in range(2):
            if x == 1:
                a("s_add_u32 s67, s67, 32768")
            for tn in range(4):
                cb = acc2(ACCB, keep[x], tn); cp = acc2(ACCB, give[x], tn); ca = acc2(ACCA, keep[x], tn)
                tb = 32 + 16 * (tn % 2)
                dd = 64 + 4 * (2 * x + (tn >> 1))
                for r in range(4):
                    a(f"v_add_f32 v{cb+r}, v{cb+r}, v{cp+r}")
                a(f"""
    v_cvt_pk_bf16_f32 v{tb}, v{ca}, v{ca+1}
    v_cvt_pk_bf16_f32 v{tb+1}, v{ca+2}, v{ca+3}
    v_cvt_pk_bf16_f32 v{tb+2}, v{cb}, v{cb+1}
    v_cvt_pk_bf16_f32 v{tb+3}, v{cb+2}, v{cb+3}
    v_lshlrev_b32 v{tb+4}, 16, v{tb}
    v_and_b32 v{tb+5}, 0xffff0000, v{tb}
    v_lshlrev_b32 v{tb+6}, 16, v{tb+1}
    v_and_b32 v{tb+7}, 0xffff0000, v{tb+1}
    v_lshlrev_b32 v{tb+8}, 16, v{tb+2}
    v_and_b32 v{tb+9}, 0xffff0000, v{tb+2}
    v_lshlrev_b32 v{tb+10}, 16, v{tb+3}
    v_and_b32 v{tb+11}, 0xffff0000, v{tb+3}
    v_mul_f32 v{tb+4}, v{28+x}, v{tb+4}
    v_mul_f32 v{tb+5}, v{28+x}, v{tb+5}
    v_mul_f32 v{tb+6}, v{28+x}, v{tb+6}
    v_mul_f32 v{tb+7}, v{28+x}, v{tb+7}
    v_mul_f32 v{tb+8}, v{30+x}, v{tb+8}
    v_mul_f32 v{tb+9}, v{30+x}, v{tb+9}
    v_mul_f32 v{tb+10}, v{30+x}, v{tb+10}
    v_mul_f32 v{tb+11}, v{30+x}, v{tb+11}
    v_cvt_pk_bf16_f32 v{tb}, v{tb+4}, v{tb+5}
    v_cvt_pk_bf16_f32 v{tb+1}, v{tb+6}, v{tb+7}
    v_cvt_pk_bf16_f32 v{tb+2}, v{tb+8}, v{tb+9}
    v_cvt_pk_bf16_f32 v{tb+3}, v{tb+10}, v{tb+11}
    v_lshlrev_b32 v{tb+4}, 16, v{tb}
    v_and_b32 v{tb+5}, 0xffff0000, v{tb}
    v_lshlrev_b32 v{tb+6}, 16, v{tb+1}
    v_and_b32 v{tb+7}, 0xffff0000, v{tb+1}
    v_lshlrev_b32 v{tb+8}, 16, v{tb+2}
    v_and_b32 v{tb+9}, 0xffff0000, v{tb+2}
    v_lshlrev_b32 v{tb+10}, 16, v{tb+3}
    v_and_b32 v{tb+11}, 0xffff0000, v{tb+3}
    v_add_f32 v{tb+4}, v{tb+4}, v{tb+8}
    v_add_f32 v{tb+5}, v{tb+5}, v{tb+9}
    v_add_f32 v{tb+6}, v{tb+6}, v{tb+10}
    v_add_f32 v{tb+7}, v{tb+7}, v{tb+11}
    v_cvt_pk_bf16_f32 v{dd+2*(tn&1)}, v{tb+4}, v{tb+5}
    v_cvt_pk_bf16_f32 v{dd+2*(tn&1)+1}, v{tb+6}, v{tb+7}
""")
                if tn & 1:
                    a(f"""
    s_nop 1
    v_permlane16_swap_b32 v{dd}, v{dd+2}
    v_permlane16_swap_b32 v{dd+1}, v{dd+3}
    buffer_store_dwordx4 v[{dd}:{dd+3}], v26, s[16:19], s67 offen offset:{32*(tn-1)}
""")
        a("s_waitcnt vmcnt(0)")
        stamp(a, 5)
        stamp_dump(a, 6, 40, 1 << 20, 32, 33)
        a(f"s_branch {name}_done")
    a.label(f"{name}_done")
    a("s_endpgm")
```

```python
from gen_common import *
import os

STAGE = 36864
NST = 4
K1_LDS = STAGE * NST
GATE_R, UP_R, QKV_R = 16384, 23552, 30720
ACC = 96
def acc(tm, jj): return ACC + (jj * 4 + tm) * 4
AF = [32, 48]
BR = 64
S_X = 4; S_WS = 8
P_GATE, P_UP, P_QKV, P_GW, P_DBG, P_WS, P_WO, P_WD, P_X = 12, 14, 16, 18, 20, 22, 24, 26, 28
SI, SJ, SW, SWM, SWN, S224, S64 = 30, 31, 32, 33, 34, 35, 36
SWST, SRST, SCNT = 37, 38, 39
SLOT_SRD = 40
SLOT_OFF = 64; SLOT_STR = 70; SLOT_LDS = 76
T0, T1, T2, T3 = 82, 83, 84, 85
S_DBG = 40; S_GW = 44; E_HB = 48; E_RB = 49; E_ROW = 50; E_CNT = 52; E_EX = 54; E_T = 56; E_M = 58
VSLOT = 6

def gen_k1(a: Asm, name="k1_kernel"):
    a(f""".globl {name}
.p2align 8
.type {name},@function""")
    a.label(name)
    a(f"""
    s_cmp_ge_u32 s2, 256
    s_cbranch_scc1 {name}_done
    s_load_dwordx2 s[{P_X}:{P_X+1}], s[0:1], 0
    s_load_dwordx2 s[{P_QKV}:{P_QKV+1}], s[0:1], 8
    s_load_dwordx2 s[{P_WO}:{P_WO+1}], s[0:1], 16
    s_load_dwordx4 s[{P_GATE}:{P_GATE+3}], s[0:1], 32
    s_load_dwordx2 s[{P_WD}:{P_WD+1}], s[0:1], 48
    s_load_dwordx2 s[{P_GW}:{P_GW+1}], s[0:1], 56
    s_load_dwordx4 s[{P_DBG}:{P_DBG+3}], s[0:1], 72
    v_and_b32 v1, 63, v0
    v_lshrrev_b32 v2, 6, v0
    s_nop 0
    v_readfirstlane_b32 s{SW}, v2
    """)
    code_touch(a, "k2_kernel_done", SW, 40, 85)
    a(f"""
    s_and_b32 s{SJ}, s2, 7
    s_lshl_b32 s{SJ}, s{SJ}, 2
    s_lshr_b32 s{T0}, s2, 6
    s_add_u32 s{SJ}, s{SJ}, s{T0}
    s_lshr_b32 s{SI}, s2, 3
    s_and_b32 s{SI}, s{SI}, 7                ; i
    s_and_b32 s{SWM}, s{SW}, 3
    s_lshr_b32 s{SWN}, s{SW}, 2
    s_mul_i32 s{S224}, s{SJ}, 224
    s_lshl_b32 s{S64}, s{SJ}, 6
    v_lshrrev_b32 v2, 4, v1                 ; g = l>>4
    v_and_b32 v3, 3, v1                     ; q = l&3
    v_lshrrev_b32 v4, 2, v1
    v_and_b32 v4, 3, v4                     ; r = (l>>2)&3
    v_and_b32 v5, 15, v1                    ; l&15
    v_lshrrev_b32 v21, 1, v2
    v_and_b32 v22, 1, v2
    v_xor_b32 v22, v22, v21
    v_lshlrev_b32 v22, 1, v22
    v_or_b32 v22, v22, v21                  ; f(g)
    v_xor_b32 v22, v22, v3                  ; c = p ^ f(Q)
    v_lshlrev_b32 v22, 4, v22
    v_lshrrev_b32 v21, 2, v1
    v_lshlrev_b32 v21, 11, v21
    v_add_u32 v25, v21, v22
    s_waitcnt lgkmcnt(0)
    s_mov_b32 s{S_X}, s{P_X}
    s_mov_b32 s{S_X+1}, s{P_X+1}
    s_mov_b32 s{S_X+2}, 4194304
    s_mov_b32 s{S_X+3}, 0x00020000
    s_mov_b32 s{S_WS}, s{P_WS}
    s_mov_b32 s{S_WS+1}, s{P_WS+1}
    s_mov_b32 s{S_WS+2}, {WS_USED}
    s_mov_b32 s{S_WS+3}, 0x00020000
    s_mov_b32 s{SWST}, 0
    s_mov_b32 s{SRST}, 0
    """)
    stamp(a, 0)
    a(f"""
    s_mul_i32 s{T2}, s{SW}, 3
    s_lshl_b32 s{T3}, s{SW}, 1
    s_add_u32 s{T3}, s{T3}, 4
    s_cmp_lt_u32 s{SW}, 4
    s_cselect_b32 s{T2}, s{T2}, s{T3}
    s_add_u32 s{T2}, s{T2}, 14
""")
    for s_ in range(5):
        srd = SLOT_SRD + 4 * s_
        vo = VSLOT + s_
        lq = a.new("slotq"); le = a.new("slote")
        if s_ < 2:
            a(f"""
    s_lshl_b32 s{T3}, s{SW}, 1
    s_add_u32 s{T3}, s{T3}, {s_}
    s_lshl_b32 s{SLOT_LDS+s_}, s{T3}, 10
    s_mov_b32 s{SLOT_OFF+s_}, 0
    s_mov_b32 s{srd}, s{P_X}
    s_mov_b32 s{srd+1}, s{P_X+1}
    s_mov_b32 s{srd+2}, 4194304
    s_mov_b32 s{srd+3}, 0x00020000
    s_mov_b32 s{SLOT_STR+s_}, 64
    s_lshl_b32 s{T0}, s{SI}, 19
    s_lshl_b32 s{T1}, s{T3}, 15
    s_add_u32 s{T0}, s{T0}, s{T1}
    v_add_u32 v{vo}, s{T0}, v25
""")
            continue
        a(f"""
    s_add_u32 s{T3}, s{T2}, {s_}            ; n
    s_lshl_b32 s{SLOT_LDS+s_}, s{T3}, 10
    s_mov_b32 s{SLOT_OFF+s_}, 0
    s_mov_b32 s{srd+3}, 0x00020000
    s_cmp_lt_u32 s{T3}, 30
    s_cbranch_scc0 {lq}
    s_cmp_lt_u32 s{T3}, 23
    s_cselect_b32 s{srd}, s{P_GATE}, s{P_UP}
    s_cselect_b32 s{srd+1}, s{P_GATE+1}, s{P_UP+1}
    s_cselect_b32 s{T0}, 16, 23
    s_sub_u32 s{T3}, s{T3}, s{T0}
    s_mov_b32 s{srd+2}, 7340032
    s_mov_b32 s{SLOT_STR+s_}, 229376
    s_lshl_b32 s{T3}, s{T3}, 6
    v_add_u32 v20, s{T3}, v1                ; slot
    v_mul_u32_u24 v21, 4682, v20
    v_lshrrev_b32 v21, 16, v21              ; rho
    v_mul_u32_u24 v22, 14, v21
    v_sub_u32 v22, v20, v22                 ; c
    v_and_b32 v23, 0x13, v21
    v_and_b32 v24, 4, v21
    v_lshlrev_b32 v24, 1, v24
    v_or_b32 v23, v23, v24
    v_and_b32 v24, 8, v21
    v_lshrrev_b32 v24, 1, v24
    v_or_b32 v23, v23, v24                  ; k
    v_mul_u32_u24 v23, 7168, v23
    v_lshlrev_b32 v22, 4, v22
    v_add_u32 v23, v23, v22
    v_add_u32 v{vo}, s{S224}, v23
    s_branch {le}
{lq}:
    s_mov_b32 s{srd}, s{P_QKV}
    s_mov_b32 s{srd+1}, s{P_QKV+1}
    s_mov_b32 s{srd+2}, 6291456
    s_mov_b32 s{SLOT_STR+s_}, 196608
    s_sub_u32 s{T3}, s{T3}, 30
    s_lshl_b32 s{T3}, s{T3}, 6
    v_add_u32 v20, s{T3}, v1                ; slot
    v_mul_u32_u24 v21, 5462, v20
    v_lshrrev_b32 v21, 16, v21              ; k
    v_mul_u32_u24 v22, 12, v21
    v_sub_u32 v22, v20, v22                 ; c'
    v_lshrrev_b32 v23, 3, v21
    v_and_b32 v23, 1, v23
    v_lshlrev_b32 v23, 1, v23
    v_xor_b32 v22, v22, v23                 ; c
    v_lshrrev_b32 v23, 2, v22               ; part
    v_lshlrev_b32 v23, 11, v23
    v_and_b32 v22, 3, v22
    v_lshlrev_b32 v22, 4, v22
    v_mul_u32_u24 v21, 6144, v21
    v_add_u32 v21, v21, v23
    v_add_u32 v21, v21, v22
    v_add_u32 v{vo}, s{S64}, v21
{le}:
""")
    def dma_one(s, wn):
        srd = SLOT_SRD + 4 * s
        L = [f"s_add_u32 m0, s{SWST}, s{SLOT_LDS+s}", f"s_nop 0",
             f"buffer_load_dwordx4 v{VSLOT+s}, s[{srd}:{srd+3}], s{SLOT_OFF+s} offen lds",
             f"s_add_u32 s{SLOT_OFF+s}, s{SLOT_OFF+s}, s{SLOT_STR+s}"]
        if s == 4:
            if wn == 1:
                return []
            if wn is None:
                lab = a.new("skip")
                L = [f"s_cmp_ge_u32 s{SW}, 4", f"s_cbranch_scc1 {lab}"] + L + [f"{lab}:"]
        return L
    def wst_advance():
        return [f"s_add_u32 s{SWST}, s{SWST}, {STAGE}", f"s_cmp_eq_u32 s{SWST}, {STAGE*NST}", f"s_cselect_b32 s{SWST}, 0, s{SWST}"]
    for st in range(3):
        for s_ in range(5):
            a("\n".join(dma_one(s_, None)))
        a(f"s_add_u32 s{SWST}, s{SWST}, {STAGE}")
    a(f"""
    v_lshrrev_b32 v21, 1, v4
    v_and_b32 v22, 1, v4
    v_xor_b32 v22, v22, v21
    v_lshlrev_b32 v22, 1, v22
    v_or_b32 v22, v22, v21                  ; f(r)
    v_xor_b32 v22, v22, v2
    v_lshlrev_b32 v22, 4, v22
    s_lshl_b32 s{T0}, s{SWM}, 12
    v_lshlrev_b32 v13, 6, v5
    v_add_u32 v13, v13, v22
    v_add_u32 v13, s{T0}, v13
    v_lshrrev_b32 v21, 1, v2                ; g1
    v_and_b32 v22, 1, v2                    ; g0
    v_lshlrev_b32 v15, 4, v21
    v_lshlrev_b32 v16, 2, v22
    v_add_u32 v15, v15, v16
    v_add_u32 v15, v15, v4
    v_mul_u32_u24 v15, 224, v15
    v_lshrrev_b32 v16, 1, v3
    v_lshlrev_b32 v16, 4, v16
    v_and_b32 v17, 1, v3
    v_lshlrev_b32 v17, 3, v17
    v_add_u32 v16, v16, v17
    v_add_u32 v15, v15, v16
    v_lshlrev_b32 v17, 3, v2
    v_add_u32 v17, v17, v4
    v_mul_u32_u24 v17, 192, v17
    v_add_u32 v17, v17, v16
    v_lshlrev_b32 v18, 5, v22
    v_sub_u32 v19, v17, v18                 ; odd
    v_add_u32 v17, v17, v18                 ; even
""")
    LA = int(os.environ.get("K1_LA", "6"))
    if LA:
        a(f"""
    s_lshl_b32 s{T0}, s2, 3
    s_add_u32 s{T0}, s{T0}, s{SW}           ; gw
    v_lshlrev_b32 v20, 11, v1
    v_add_u32 v20, s{T0}, v20
    v_subrev_u32 v21, 5120, v20
    v_min_u32 v21, 2047, v21
    v_lshlrev_b32 v21, 11, v21              ; off
    v_add_u32 v21, {LA*64}, v21
    v_mov_b32 v84, 64
    v_mov_b32 v82, s{P_X}
    v_mov_b32 v83, s{P_X+1}
    v_subrev_u32 v22, 3584, v20
    v_lshlrev_b32 v22, 7, v22
    v_add_u32 v22, {LA*196608}, v22
    v_cmp_gt_u32 vcc, 5120, v20
    v_mov_b32 v23, 196608
    v_mov_b32 v24, s{P_QKV}
    v_mov_b32 v25, s{P_QKV+1}
    v_cndmask_b32 v21, v21, v22, vcc
    v_cndmask_b32 v84, v84, v23, vcc
    v_cndmask_b32 v82, v82, v24, vcc
    v_cndmask_b32 v83, v83, v25, vcc
    v_subrev_u32 v22, 1792, v20
    v_lshlrev_b32 v22, 7, v22
    v_add_u32 v22, {LA*229376}, v22
    v_cmp_gt_u32 vcc, 3584, v20
    v_mov_b32 v23, 229376
    v_mov_b32 v24, s{P_UP}
    v_mov_b32 v25, s{P_UP+1}
    v_cndmask_b32 v21, v21, v22, vcc
    v_cndmask_b32 v84, v84, v23, vcc
    v_cndmask_b32 v82, v82, v24, vcc
    v_cndmask_b32 v83, v83, v25, vcc
    v_lshlrev_b32 v22, 7, v20
    v_add_u32 v22, {LA*229376}, v22
    v_cmp_gt_u32 vcc, 1792, v20
    v_mov_b32 v24, s{P_GATE}
    v_mov_b32 v25, s{P_GATE+1}
    s_nop 0
    v_cndmask_b32 v21, v21, v22, vcc
    v_cndmask_b32 v82, v82, v24, vcc
    v_cndmask_b32 v83, v83, v25, vcc
    v_add_co_u32 v82, vcc, v82, v21
    s_nop 1
    v_addc_co_u32 v83, vcc, 0, v83, vcc
    s_mov_b64 exec, 15
    global_load_dword v85, v[82:83], off
    global_load_dword v85, v[82:83], off
    s_mov_b64 exec, -1
""")
    for r in range(ACC, 256):
        a(f"v_mov_b32 v{r}, 0")
    a(f"""
    s_waitcnt vmcnt({8 + 2 * (LA > 0)})
    s_barrier
    s_cmp_eq_u32 s{SWN}, 0
    s_cbranch_scc0 {name}_wn1
""")

    def gate_loads(rr):
        b = 56 + 16 * rr
        a(f"""
    s_lshl_b32 s{T0}, s{SI}, 8
    s_lshl_b32 s{T1}, s{SJ}, 3
    s_add_u32 s{T0}, s{T0}, s{T1}
    s_lshl_b32 s{T1}, s{SWM}, 1
    s_add_u32 s{T0}, s{T0}, s{T1}
    s_add_u32 s{E_ROW+rr}, s{T0}, {rr}
    s_lshl_b32 s{T0}, s{E_ROW+rr}, 11
    v_lshlrev_b32 v20, 5, v1
    buffer_load_dwordx4 v[{b}:{b+3}], v20, s[{S_X}:{S_X+3}], s{T0} offen
    buffer_load_dwordx4 v[{b+4}:{b+7}], v20, s[{S_X}:{S_X+3}], s{T0} offen offset:16
""")
        if rr == 0:
            a(f"""
    buffer_load_dwordx4 v[88:91], v20, s[{S_GW}:{S_GW+3}], 0 offen
    buffer_load_dwordx4 v[92:95], v20, s[{S_GW}:{S_GW+3}], 0 offen offset:16
""")
    def gate_compute(rr):
        b = 56 + 16 * rr
        a("v_mov_b32 v24, 0")
        for d in range(8):
            a(f"""
    v_lshlrev_b32 v25, 16, v{b+d}
    v_and_b32 v26, 0xffff0000, v{b+d}
    v_lshlrev_b32 v27, 16, v{88+d}
    v_and_b32 v28, 0xffff0000, v{88+d}
    v_mul_f32 v25, v25, v27
    v_mul_f32 v26, v26, v28
    v_cvt_pk_bf16_f32 v25, v25, v26
    v_lshlrev_b32 v26, 16, v25
    v_and_b32 v25, 0xffff0000, v25
    v_add_f32 v24, v24, v26
    v_add_f32 v24, v24, v25
""")
        for off in (0x041F, 0x081F, 0x101F, 0x201F, 0x401F):
            a(f"""
    ds_swizzle_b32 v25, v24 offset:{off}
    s_waitcnt lgkmcnt(0)
    v_add_f32 v24, v24, v25
""")
        a(f"""
    s_nop 0
    v_readlane_b32 s{T0}, v24, 32
    s_nop 1
    v_add_f32 v24, s{T0}, v24
    v_cvt_pk_bf16_f32 v24, v24, v24
    v_lshlrev_b32 v24, 16, v24
    v_mul_f32 v24, 0xbfb8aa3b, v24
    v_exp_f32 v24, v24
    s_nop 0
    v_add_f32 v24, 1.0, v24
    v_rcp_f32 v24, v24
    s_nop 0
    v_cvt_pk_bf16_f32 v24, v24, v24
    v_lshlrev_b32 v24, 16, v24
    s_lshl_b32 s{T0}, s{E_ROW+rr}, 2
    s_add_u32 s{T0}, s{T0}, {G_OFF}
    v_mov_b32 v25, 0
    s_mov_b64 s[{E_EX}:{E_EX+1}], exec
    s_mov_b64 exec, 1
    buffer_store_dword v24, v25, s[{S_WS}:{S_WS+3}], s{T0} offen
    s_mov_b64 exec, s[{E_EX}:{E_EX+1}]
""")

    def frag_desc(wn):
        d = []
        if wn == 0:
            for t in range(5): d.append((16, GATE_R + 32 * t, 1792, 'T'))
            for t in range(5): d.append((16, UP_R + 32 * t, 1792, 'T'))
        else:
            for t in (5, 6): d.append((16, GATE_R + 32 * t, 1792, 'T'))
            for t in (5, 6): d.append((16, UP_R + 32 * t, 1792, 'T'))
            for t in range(6):
                d.append((18 if t % 2 == 0 else 20, QKV_R + 32 * t, 768, 'T' if t < 2 else 'N'))
        return d
    def set_addrs(wn):
        L = [f"v_add_u32 v14, s{SRST}, v13", f"v_add_u32 v16, s{SRST}, v15"]
        if wn == 1:
            L += [f"v_add_u32 v18, s{SRST}, v17", f"v_add_u32 v20, s{SRST}, v19"]
        L += [f"s_add_u32 s{SRST}, s{SRST}, {STAGE}", f"s_cmp_eq_u32 s{SRST}, {STAGE*NST}", f"s_cselect_b32 s{SRST}, 0, s{SRST}"]
        return L
    def rd_b(desc, jj, slot):
        ar, off, sec, _ = desc[jj]
        b = BR + 4 * slot
        return [f"ds_read_b64_tr_b16 v[{b}:{b+1}], v{ar} offset:{off}",
                f"ds_read_b64_tr_b16 v[{b+2}:{b+3}], v{ar} offset:{off+sec}"]
    def rd_a(par):
        return [f"ds_read_b128 v[{AF[par]+4*tm}:{AF[par]+4*tm+3}], v14 offset:{1024*tm}" for tm in range(4)]

    def step(wn, par, dma, vm, barrier, pre, pf=False, touch=False):
        desc = frag_desc(wn)
        if vm is not None:
            a(f"s_waitcnt vmcnt({vm})")
        if barrier:
            a("s_barrier")
        for jj in range(10):
            slot = (jj + 2 * par) % 4
            if jj + 2 < 10:
                a("\n".join(rd_b(desc, jj + 2, (jj + 2 + 2 * par) % 4)))
                a("s_waitcnt lgkmcnt(4)")
            elif pre:
                npar = 1 - par
                if jj == 8:
                    a("\n".join(set_addrs(wn)))
                    a("\n".join(rd_a(npar)))
                    a("\n".join(rd_b(desc, 0, (0 + 2 * npar) % 4)))
                else:
                    a("\n".join(rd_b(desc, 1, (1 + 2 * npar) % 4)))
                a("s_waitcnt lgkmcnt(8)")
            else:
                a(f"s_waitcnt lgkmcnt({2 if jj == 8 else 0})")
            b = BR + 4 * slot
            for tm in range(4):
                c = acc(tm, jj); x = AF[par] + 4 * tm
                if desc[jj][3] == 'T':
                    a(f"v_mfma_f32_16x16x32_bf16 v[{c}:{c+3}], v[{b}:{b+3}], v[{x}:{x+3}], v[{c}:{c+3}]")
                else:
                    a(f"v_mfma_f32_16x16x32_bf16 v[{c}:{c+3}], v[{x}:{x+3}], v[{b}:{b+3}], v[{c}:{c+3}]")
            if pf and jj == 0:
                a(f"""
    s_lshl_b32 s{T0}, s2, 3
    s_add_u32 s{T0}, s{T0}, s{SW}
    s_lshl_b32 s{T0}, s{T0}, 10
    v_lshlrev_b32 v80, 4, v1
    v_add_u32 v80, s{T0}, v80
    s_mov_b32 s{SLOT_SRD}, s{P_WD}
    s_mov_b32 s{SLOT_SRD+1}, s{P_WD+1}
    s_mov_b32 s{SLOT_SRD+2}, 7340032
    s_mov_b32 s{SLOT_SRD+4}, s{P_WO}
    s_mov_b32 s{SLOT_SRD+5}, s{P_WO+1}
    s_mov_b32 s{SLOT_SRD+6}, 2097152
    s_mov_b32 s{T0}, 0
""")
            if pf and jj < 4:
                a(f"buffer_load_dwordx4 v[84:87], v80, s[{SLOT_SRD}:{SLOT_SRD+3}], s{T0} offen\ns_add_u32 s{T0}, s{T0}, 0x200000")
            if pf and jj == 4:
                a(f"buffer_load_dwordx4 v[84:87], v80, s[{SLOT_SRD+4}:{SLOT_SRD+7}], 0 offen")
            if dma and jj < 5:
                a("\n".join(dma_one(jj, wn)))
                if jj == 4:
                    a("\n".join(wst_advance()))
                    if touch:
                        lab = a.new("nt")
                        thr = -(-(LA - 2) // 2) if par == 0 else -(-(LA - 1) // 2)
                        a(f"""
    s_mov_b64 exec, 15
    global_load_dword v85, v[82:83], off
    s_cmp_lt_u32 s{SCNT}, {thr}
    s_cbranch_scc1 {lab}
    v_add_co_u32 v82, vcc, v82, v84
    s_nop 1
    v_addc_co_u32 v83, vcc, 0, v83, vcc
{lab}:
    s_mov_b64 exec, -1
""")

    def glu_calc(G, U, tb, d):
        a(f"""
    v_cvt_pk_bf16_f32 v{tb}, v{G}, v{G+1}
    v_cvt_pk_bf16_f32 v{tb+1}, v{G+2}, v{G+3}
    v_cvt_pk_bf16_f32 v{tb+2}, v{U}, v{U+1}
    v_cvt_pk_bf16_f32 v{tb+3}, v{U+2}, v{U+3}
    v_lshlrev_b32 v{tb+4}, 16, v{tb}
    v_lshlrev_b32 v{tb+5}, 16, v{tb+2}
    v_and_b32 v{tb}, 0xffff0000, v{tb}
    v_and_b32 v{tb+2}, 0xffff0000, v{tb+2}
    v_mul_f32 v{tb+4}, v{tb+4}, v{tb+5}
    v_mul_f32 v{tb}, v{tb}, v{tb+2}
    v_lshlrev_b32 v{tb+5}, 16, v{tb+1}
    v_lshlrev_b32 v{tb+2}, 16, v{tb+3}
    v_and_b32 v{tb+1}, 0xffff0000, v{tb+1}
    v_and_b32 v{tb+3}, 0xffff0000, v{tb+3}
    v_mul_f32 v{tb+5}, v{tb+5}, v{tb+2}
    v_mul_f32 v{tb+1}, v{tb+1}, v{tb+3}
    v_cvt_pk_bf16_f32 v{d}, v{tb+4}, v{tb}
    v_cvt_pk_bf16_f32 v{d+1}, v{tb+5}, v{tb+1}
""")
    rot = [0]
    def glu_store(groups, tms):
        for tm in tms:
            a(f"s_add_u32 s{E_T}, s{E_HB}, {tm * 16 * AH_LD}")
            for grp in groups:
                d = 32 + 4 * (rot[0] % 4); rot[0] += 1
                for x, (jg, ju, t) in enumerate(grp):
                    glu_calc(acc(tm, jg), acc(tm, ju), 24, d + 2 * x)
                t = grp[0][2]
                if len(grp) == 2:
                    a(f"""
    s_nop 1
    v_permlane16_swap_b32 v{d}, v{d+2}
    v_permlane16_swap_b32 v{d+1}, v{d+3}
    buffer_store_dwordx4 v[{d}:{d+3}], v19, s[{S_WS}:{S_WS+3}], s{E_T} offen offset:{32*t}
""")
                else:
                    a(f"buffer_store_dwordx2 v[{d}:{d+1}], v21, s[{S_WS}:{S_WS+3}], s{E_T} offen offset:{32*t}")

    def phi4(src, dst, t0):
        L = []
        for h in range(2):
            s0, s1 = src + 2 * h, src + 2 * h + 1
            L += [f"v_cvt_pk_bf16_f32 v{t0}, v{s0}, v{s1}",
                  f"v_lshlrev_b32 v{t0+1}, 16, v{t0}",
                  f"v_and_b32 v{t0}, 0xffff0000, v{t0}",
                  f"v_mul_f32 v{t0+2}, 0x3fb8aa3b, v{t0+1}",
                  f"v_mul_f32 v{t0+3}, 0x3fb8aa3b, v{t0}",
                  f"v_min_f32 v{t0+2}, 0, v{t0+2}",
                  f"v_min_f32 v{t0+3}, 0, v{t0+3}",
                  f"v_exp_f32 v{t0+2}, v{t0+2}",
                  f"v_exp_f32 v{t0+3}, v{t0+3}",
                  f"v_max_f32 v{t0+1}, 0, v{t0+1}",
                  f"v_max_f32 v{t0}, 0, v{t0}",
                  f"v_add_f32 v{t0+2}, v{t0+2}, v{t0+1}",
                  f"v_add_f32 v{t0+3}, v{t0+3}, v{t0}",
                  f"v_cvt_pk_bf16_f32 v{t0}, v{t0+2}, v{t0+3}",
                  f"v_lshlrev_b32 v{t0+1}, 16, v{t0}",
                  f"v_and_b32 v{t0}, 0xffff0000, v{t0}",
                  f"v_add_f32 v{t0+1}, 0x358637bd, v{t0+1}",
                  f"v_add_f32 v{t0}, 0x358637bd, v{t0}",
                  f"v_cvt_pk_bf16_f32 v{dst+h}, v{t0+1}, v{t0}"]
        return L

    for wn in (0, 1):
        if wn == 1:
            a.label(f"{name}_wn1")
        desc = frag_desc(wn)
        a("\n".join(set_addrs(wn)))
        a("\n".join(rd_a(0)))
        a("\n".join(rd_b(desc, 0, 0)))
        a("\n".join(rd_b(desc, 1, 1)))
        stamp(a, 1)
        a(f"s_mov_b32 s{SCNT}, 14")
        lp = f"{name}_loop{wn}"
        a.label(lp)
        VM = 5 if wn == 0 else 4
        step(wn, 0, True, VM + 2 * (LA > 0), True, True, touch=LA > 0)
        step(wn, 1, True, VM + 2 * (LA > 0), True, True, touch=LA > 0)
        a(f"""
    s_sub_u32 s{SCNT}, s{SCNT}, 1
    s_cmp_lg_u32 s{SCNT}, 0
    s_cbranch_scc1 {lp}
""")
        step(wn, 0, True, VM + 2 * (LA > 0), True, True)
        step(wn, 1, False, VM + 1 * (LA > 0), True, True, pf=True)
        step(wn, 0, False, 5, True, True)
        step(wn, 1, False, None, False, False)
        stamp(a, 2)
        if wn == 1:
            a("s_setprio 3")
        a(f"""
    s_nop 7
    s_nop 7
    s_barrier
    s_mov_b32 s{S_DBG}, s{P_DBG}
    s_mov_b32 s{S_DBG+1}, s{P_DBG+1}
    s_mov_b32 s{S_DBG+2}, 256
    s_mov_b32 s{S_DBG+3}, 0x00020000
    s_mov_b32 s{S_GW}, s{P_GW}
    s_mov_b32 s{S_GW+1}, s{P_GW+1}
    s_mov_b32 s{S_GW+2}, 2048
    s_mov_b32 s{S_GW+3}, 0x00020000
    s_lshl_b32 s{T0}, s{SI}, 8
    s_lshl_b32 s{T1}, s{SWM}, 6
    s_add_u32 s{T0}, s{T0}, s{T1}
    s_mul_i32 s{E_RB}, s{T0}, {AH_LD}       ; (256i+64wm)*ld
    s_add_u32 s{E_HB}, s{E_RB}, s{S224}
    s_add_u32 s{E_HB}, s{E_HB}, 2048        ; h base
    v_mul_u32_u24 v21, {AH_LD}, v5
    v_lshlrev_b32 v22, 3, v2
    v_add_u32 v21, v21, v22                 ; (l&15)*ld + 8g
    v_mul_u32_u24 v19, {AH_LD}, v5
    v_and_b32 v22, 1, v2
    v_lshlrev_b32 v22, 5, v22
    v_add_u32 v19, v19, v22
    v_lshrrev_b32 v22, 1, v2
    v_lshlrev_b32 v22, 4, v22
    v_add_u32 v19, v19, v22                 ; (l&15)*ld + 32(g&1) + 16(g>>1)
""")
        if wn == 0:
            G0 = [[(0, 5, 0), (1, 6, 1)], [(2, 7, 2), (3, 8, 3)], [(4, 9, 4)]]
            gate_loads(0); gate_loads(1)
            glu_store(G0, [0])
            a("s_barrier")
            glu_store(G0, [1])
            a("s_barrier")
            glu_store(G0, [2, 3])
            a("s_waitcnt vmcnt(12)")
            gate_compute(0); gate_compute(1)
            stamp(a, 3)
            a("s_barrier")
            stamp(a, 4)
            a("s_waitcnt vmcnt(0)")
            stamp(a, 5)
            stamp_dump(a, 6, SW, 0, P_WS, P_WS + 1)
            a(f"s_branch {name}_done")
        else:
            a("v_mov_b32 v48, 0x3f803f80\nv_mov_b32 v49, 0x3f803f80\nv_mov_b32 v50, 0x3f803f80\nv_mov_b32 v51, 0x3f803f80")
            for pp in range(2):
                for dt in range(2):
                    for hh in range(2):
                        a("\n".join(phi4(acc(2 * pp + hh, 6 + dt), 32 + 4 * dt + 2 * hh, 80)))
                for et in range(2):
                    for hh in range(2):
                        s = acc(2 * pp + hh, 8 + et); d = 40 + 4 * et + 2 * hh
                        a(f"v_cvt_pk_bf16_f32 v{d}, v{s}, v{s+1}\nv_cvt_pk_bf16_f32 v{d+1}, v{s+2}, v{s+3}")
                a("s_nop 1")
                for dt in range(2):
                    for et in range(2):
                        c = 56 + 4 * (dt * 2 + et)
                        cc = f"v[{c}:{c+3}]" if pp else "0"
                        a(f"v_mfma_f32_16x16x32_bf16 v[{c}:{c+3}], v[{32+4*dt}:{35+4*dt}], v[{40+4*et}:{43+4*et}], {cc}")
                    c = 72 + 4 * dt
                    cc = f"v[{c}:{c+3}]" if pp else "0"
                    a(f"v_mfma_f32_16x16x32_bf16 v[{c}:{c+3}], v[{32+4*dt}:{35+4*dt}], v[48:51], {cc}")
            a(f"""
    s_nop 7
    s_mul_i32 s{T0}, s{SWM}, 6144
    v_lshlrev_b32 v22, 3, v1                ; lane*8
    v_add_u32 v23, s{T0}, v22
""")
            for p in range(12):
                a(f"ds_write_b64 v23, v[{56+2*p}:{57+2*p}] offset:{512*p}")
            a(f"""
    s_waitcnt lgkmcnt(0)
    s_barrier                                ; B2
    s_mul_i32 s{T0}, s{SWM}, 1536
    v_add_u32 v23, s{T0}, v22
""")
            for p in range(3):
                for w in range(4):
                    a(f"ds_read_b64 v[{32+8*p+2*w}:{33+8*p+2*w}], v23 offset:{w*6144+512*p}")
            a(f"""
    s_lshl_b32 s{T0}, s{SJ}, 3
    s_add_u32 s{T0}, s{T0}, s{SI}
    s_mul_i32 s{T0}, s{T0}, 6144
    s_add_u32 s{T0}, s{T0}, {KVP_OFF}
    s_waitcnt lgkmcnt(0)
""")
            for p in range(3):
                b = 32 + 8 * p
                a(f"""
    v_add_f32 v{b}, v{b}, v{b+2}
    v_add_f32 v{b+1}, v{b+1}, v{b+3}
    v_add_f32 v{b+4}, v{b+4}, v{b+6}
    v_add_f32 v{b+5}, v{b+5}, v{b+7}
    v_add_f32 v{b}, v{b}, v{b+4}
    v_add_f32 v{b+1}, v{b+1}, v{b+5}
    buffer_store_dwordx2 v[{b}:{b+1}], v23, s[{S_WS}:{S_WS+3}], s{T0} offen offset:{512*p} sc1
""")
            lsk = a.new("nosig")
            a(f"""
    s_waitcnt vmcnt(0)
    s_barrier                                ; B3
    s_lshl_b32 s{E_CNT}, s{SJ}, 2
    v_mov_b32 v24, 1
    v_mov_b32 v25, 0
    s_cmp_lg_u32 s{SWM}, 0
    s_cbranch_scc1 {lsk}
    s_mov_b64 s[{E_EX}:{E_EX+1}], exec
    s_mov_b64 exec, 1
    buffer_atomic_add v24, v25, s[{S_DBG}:{S_DBG+3}], s{E_CNT} offen sc1
    s_mov_b64 exec, s[{E_EX}:{E_EX+1}]
{lsk}:
""")
            stamp(a, 3)
            glu_store([[(0, 2, 5), (1, 3, 6)]], range(4))
            for tm in range(4):
                for dt in range(2):
                    a("\n".join(phi4(acc(tm, 4 + dt), 32 + 4 * tm + 2 * dt, 80)))
            lp2 = a.new("poll")
            a(f"""
    v_mov_b32 v25, 0
{lp2}:
    buffer_load_dword v24, v25, s[{S_DBG}:{S_DBG+3}], s{E_CNT} offen sc1
    s_waitcnt vmcnt(0)
    v_readfirstlane_b32 s{T0}, v24
    s_cmp_ge_u32 s{T0}, 8
    s_cbranch_scc1 {lp2}_ok
    s_sleep 2
    s_branch {lp2}
{lp2}_ok:
""")
            stamp(a, 4)
            a(f"""
    s_lshl_b32 s{T0}, s{SJ}, 3
    s_mul_i32 s{T0}, s{T0}, 6144
    s_add_u32 s{T0}, s{T0}, {KVP_OFF}
""")
            for ii in range(8):
                for p in range(3):
                    b = 96 + (p * 8 + ii) * 2
                    a(f"buffer_load_dwordx2 v[{b}:{b+1}], v23, s[{S_WS}:{S_WS+3}], s{T0} offen offset:{512*p} sc1")
                if ii < 7:
                    a(f"s_add_u32 s{T0}, s{T0}, 6144")
            a("s_waitcnt vmcnt(0)")
            for p in range(3):
                b = 96 + p * 16
                for st in (8, 4, 2):
                    for k in range(0, st, 2):
                        a(f"v_add_f32 v{b+k}, v{b+k}, v{b+k+st}\nv_add_f32 v{b+k+1}, v{b+k+1}, v{b+k+st+1}")
                a(f"ds_write_b64 v23, v[{b}:{b+1}] offset:{512*p}")
            a("""
    s_waitcnt lgkmcnt(0)
    s_barrier                                ; B4
""")
            for p in range(12):
                a(f"ds_read_b64 v[{56+2*p}:{57+2*p}], v22 offset:{512*p}")
            a("s_waitcnt lgkmcnt(0)")
            for et in range(2):
                for dt in range(2):
                    s = 56 + 4 * (dt * 2 + et); d = 96 + 4 * et + 2 * dt
                    a(f"v_cvt_pk_bf16_f32 v{d}, v{s}, v{s+1}\nv_cvt_pk_bf16_f32 v{d+1}, v{s+2}, v{s+3}")
            for dt in range(2):
                s = 72 + 4 * dt; d = 104 + 2 * dt
                a(f"v_cvt_pk_bf16_f32 v{d}, v{s}, v{s+1}\nv_cvt_pk_bf16_f32 v{d+1}, v{s+2}, v{s+3}")
            a(f"s_add_u32 s{E_HB}, s{E_RB}, s{S64}\ns_nop 0")
            for tm in range(4):
                for et in range(3):
                    c = 112 + 12 * tm + 4 * et
                    a(f"v_mfma_f32_16x16x32_bf16 v[{c}:{c+3}], v[{96+4*et}:{99+4*et}], v[{32+4*tm}:{35+4*tm}], 0")
            a("s_nop 7")
            for tm in range(4):
                a(f"s_add_u32 s{E_T}, s{E_HB}, {tm * 16 * AH_LD}")
                dn = 112 + 12 * tm + 8
                a(f"""
    v_cvt_pk_bf16_f32 v24, v{dn}, v{dn}
    v_lshlrev_b32 v24, 16, v24
    v_add_f32 v24, 0x358637bd, v24
    v_cvt_pk_bf16_f32 v24, v24, v24
    v_lshlrev_b32 v24, 16, v24
    v_rcp_f32 v24, v24
""")
                d = 72 + 4 * tm
                for et in range(2):
                    c = 112 + 12 * tm + 4 * et
                    tb = 56 + 8 * et
                    a(f"""
    v_cvt_pk_bf16_f32 v{tb}, v{c}, v{c+1}
    v_cvt_pk_bf16_f32 v{tb+1}, v{c+2}, v{c+3}
    v_lshlrev_b32 v{tb+2}, 16, v{tb}
    v_and_b32 v{tb+3}, 0xffff0000, v{tb}
    v_lshlrev_b32 v{tb+4}, 16, v{tb+1}
    v_and_b32 v{tb+5}, 0xffff0000, v{tb+1}
    v_mul_f32 v{tb+2}, v{tb+2}, v24
    v_mul_f32 v{tb+3}, v{tb+3}, v24
    v_mul_f32 v{tb+4}, v{tb+4}, v24
    v_mul_f32 v{tb+5}, v{tb+5}, v24
    v_cvt_pk_bf16_f32 v{d+2*et}, v{tb+2}, v{tb+3}
    v_cvt_pk_bf16_f32 v{d+2*et+1}, v{tb+4}, v{tb+5}
""")
                a(f"""
    s_nop 1
    v_permlane16_swap_b32 v{d}, v{d+2}
    v_permlane16_swap_b32 v{d+1}, v{d+3}
    buffer_store_dwordx4 v[{d}:{d+3}], v19, s[{S_WS}:{S_WS+3}], s{E_T} offen
""")
    a("s_waitcnt vmcnt(0)")
    stamp(a, 5)
    stamp_dump(a, 6, SW, 0, P_WS, P_WS + 1)
    a.label(f"{name}_done")
    a("s_endpgm")
```

```python
class Asm:
    def __init__(self):
        self.lines = []
        self.uid = 0
    def __call__(self, s):
        for ln in s.split("\n"):
            ln = ln.strip()
            if ln:
                self.lines.append("    " + ln if not ln.endswith(":") else ln)
    def label(self, name):
        self.lines.append(name + ":")
    def new(self, p="L"):
        self.uid += 1
        return f"{p}_{self.uid}"
    def text(self):
        return "\n".join(self.lines) + "\n"

def vr(b, n):
    return f"v[{b}:{b+n-1}]" if n > 1 else f"v{b}"
def sr(b, n):
    return f"s[{b}:{b+n-1}]" if n > 1 else f"s{b}"

AH_OFF = 0
AH_LD = 4608 * 2
AH_BYTES = 2048 * AH_LD
KVP_OFF = AH_BYTES
KVP_BYTES = 32 * 8 * 24 * 64 * 4
G_OFF = KVP_OFF + KVP_BYTES
G_BYTES = 2048 * 4
P2_OFF = G_OFF + G_BYTES
P2_BYTES = 128 * 128 * 128 * 4
WS_USED = P2_OFF + P2_BYTES

def kd(name, vgpr, sgpr=102, accum=None):
    if accum is None:
        accum = (vgpr + 3) // 4 * 4
    return f""".amdhsa_kernel {name}
  .amdhsa_next_free_vgpr {vgpr}
  .amdhsa_next_free_sgpr {sgpr}
  .amdhsa_accum_offset {accum}
  .amdhsa_group_segment_fixed_size 0
  .amdhsa_kernarg_size 88
  .amdhsa_user_sgpr_count 2
  .amdhsa_user_sgpr_kernarg_segment_ptr 1
  .amdhsa_system_sgpr_workgroup_id_x 1
.end_amdhsa_kernel
"""

DIAG_OFF = 200 * 1024 * 1024
import os
DIAG = os.environ.get("DIAG", "0") == "1"
def stamp(a, i):
    if DIAG:
        if i == 6:
            a("s_memrealtime s[100:101]\ns_waitcnt lgkmcnt(0)")
            return
        if i == 0:
            a("s_memrealtime s[98:99]")
        a(f"s_memtime s[{86+2*i}:{87+2*i}]\ns_waitcnt lgkmcnt(0)")
def stamp_dump(a, n, wave_sreg, koff, ws_lo, ws_hi):
    if not DIAG: return
    stamp(a, 6)
    a("v_mov_b32 v5, s86\nv_mov_b32 v6, s98\nv_mov_b32 v7, s100")
    a(f"""
    s_mov_b32 s84, s{ws_lo}
    s_mov_b32 s85, s{ws_hi}
    s_mov_b32 s86, 0x10000000
    s_mov_b32 s87, 0x00020000
    s_lshl_b32 s58, s2, 3
    s_add_u32 s58, s58, s{wave_sreg}
    s_lshl_b32 s58, s58, 6
    s_add_u32 s58, s58, {DIAG_OFF + koff}
    v_mov_b32 v3, 0
    s_mov_b64 exec, 1
""")
    a("buffer_store_dword v5, v3, s[84:87], s58 offen")
    a("buffer_store_dword v6, v3, s[84:87], s58 offen offset:32")
    a("buffer_store_dword v7, v3, s[84:87], s58 offen offset:36")
    for i in range(1, n):
        a(f"v_mov_b32 v4, s{86+2*i}\nbuffer_store_dword v4, v3, s[84:87], s58 offen offset:{4*i}")
    a("s_waitcnt vmcnt(0)")

def code_touch(a, endlabel, wave_sreg, st, dst):
    lab = a.new("pc")
    a(f"""
    s_getpc_b64 s[{st}:{st+1}]
{lab}:
    s_lshl_b32 s{st+2}, s{wave_sreg}, 13
    v_lshlrev_b32 v20, 7, v1
    v_add_u32 v20, s{st+2}, v20
    v_mov_b32 v23, s{st+1}
    v_add_co_u32 v22, vcc, s{st}, v20
    s_nop 1
    v_addc_co_u32 v23, vcc, 0, v23, vcc
    v_cmp_gt_u32 vcc, {endlabel}-{lab}, v20
    s_and_saveexec_b64 s[{st+2}:{st+3}], vcc
    s_cbranch_execz {lab}_skip
    global_load_dword v{dst}, v[22:23], off
{lab}_skip:
    s_mov_b64 exec, s[{st+2}:{st+3}]
""")
```

```python
from gen_common import *
import os

STAGE = 36864
NST = 4
K1_LDS = STAGE * NST
GATE_R, UP_R, QKV_R = 16384, 23552, 30720
ACC = 96
def acc(tm, jj): return ACC + (jj * 4 + tm) * 4
AF = [32, 48]
BR = 64
S_X = 4; S_WS = 8
P_GATE, P_UP, P_QKV, P_GW, P_DBG, P_WS, P_WO, P_WD, P_X = 12, 14, 16, 18, 20, 22, 24, 26, 28
SI, SJ, SW, SWM, SWN, S224, S64 = 30, 31, 32, 33, 34, 35, 36
SWST, SRST, SCNT = 37, 38, 39
SLOT_SRD = 40
SLOT_OFF = 64; SLOT_STR = 70; SLOT_LDS = 76
T0, T1, T2, T3 = 82, 83, 84, 85
S_DBG = 40; S_GW = 44; E_HB = 48; E_RB = 49; E_ROW = 50; E_CNT = 52; E_EX = 54; E_T = 56; E_M = 58
VSLOT = 6
STF = os.environ.get("K1_STF", "")

def gen_k1(a: Asm, name="k1_kernel"):
    a(f""".globl {name}
.p2align 8
.type {name},@function""")
    a.label(name)
    a(f"""
    s_cmp_ge_u32 s2, 256
    s_cbranch_scc1 {name}_done
    s_load_dwordx2 s[{P_X}:{P_X+1}], s[0:1], 0
    s_load_dwordx2 s[{P_QKV}:{P_QKV+1}], s[0:1], 8
    s_load_dwordx2 s[{P_WO}:{P_WO+1}], s[0:1], 16
    s_load_dwordx4 s[{P_GATE}:{P_GATE+3}], s[0:1], 32
    s_load_dwordx2 s[{P_WD}:{P_WD+1}], s[0:1], 48
    s_load_dwordx2 s[{P_GW}:{P_GW+1}], s[0:1], 56
    s_load_dwordx4 s[{P_DBG}:{P_DBG+3}], s[0:1], 72
    v_and_b32 v1, 63, v0
    v_lshrrev_b32 v2, 6, v0
    s_nop 0
    v_readfirstlane_b32 s{SW}, v2
    s_and_b32 s{SJ}, s2, 7
    s_lshl_b32 s{SJ}, s{SJ}, 2
    s_lshr_b32 s{T0}, s2, 6
    s_add_u32 s{SJ}, s{SJ}, s{T0}
    s_lshr_b32 s{SI}, s2, 3
    s_and_b32 s{SI}, s{SI}, 7                ; i
    s_and_b32 s{SWM}, s{SW}, 3
    s_lshr_b32 s{SWN}, s{SW}, 2
    s_mul_i32 s{S224}, s{SJ}, 224
    s_lshl_b32 s{S64}, s{SJ}, 6
    v_lshrrev_b32 v2, 4, v1                 ; g = l>>4
    v_and_b32 v3, 3, v1                     ; q = l&3
    v_lshrrev_b32 v4, 2, v1
    v_and_b32 v4, 3, v4                     ; r = (l>>2)&3
    v_and_b32 v5, 15, v1                    ; l&15
    v_lshrrev_b32 v21, 1, v2
    v_and_b32 v22, 1, v2
    v_xor_b32 v22, v22, v21
    v_lshlrev_b32 v22, 1, v22
    v_or_b32 v22, v22, v21                  ; f(g)
    v_xor_b32 v22, v22, v3                  ; c = p ^ f(Q)
    v_lshlrev_b32 v22, 4, v22
    v_lshrrev_b32 v21, 2, v1
    v_lshlrev_b32 v21, 11, v21
    v_add_u32 v25, v21, v22
    s_waitcnt lgkmcnt(0)
    s_mov_b32 s{S_X}, s{P_X}
    s_mov_b32 s{S_X+1}, s{P_X+1}
    s_mov_b32 s{S_X+2}, 4194304
    s_mov_b32 s{S_X+3}, 0x00020000
    s_mov_b32 s{S_WS}, s{P_WS}
    s_mov_b32 s{S_WS+1}, s{P_WS+1}
    s_mov_b32 s{S_WS+2}, {WS_USED}
    s_mov_b32 s{S_WS+3}, 0x00020000
    s_mov_b32 s{SWST}, 0
    s_mov_b32 s{SRST}, 0
    """)
    stamp(a, 0)
    a(f"""
    s_mul_i32 s{T2}, s{SW}, 3
    s_lshl_b32 s{T3}, s{SW}, 1
    s_add_u32 s{T3}, s{T3}, 4
    s_cmp_lt_u32 s{SW}, 4
    s_cselect_b32 s{T2}, s{T2}, s{T3}
    s_add_u32 s{T2}, s{T2}, 14
""")
    for s_ in range(5):
        srd = SLOT_SRD + 4 * s_
        vo = VSLOT + s_
        lq = a.new("slotq"); le = a.new("slote")
        if s_ < 2:
            a(f"""
    s_lshl_b32 s{T3}, s{SW}, 1
    s_add_u32 s{T3}, s{T3}, {s_}
    s_lshl_b32 s{SLOT_LDS+s_}, s{T3}, 10
    s_mov_b32 s{SLOT_OFF+s_}, 0
    s_mov_b32 s{srd}, s{P_X}
    s_mov_b32 s{srd+1}, s{P_X+1}
    s_mov_b32 s{srd+2}, 4194304
    s_mov_b32 s{srd+3}, 0x00020000
    s_mov_b32 s{SLOT_STR+s_}, 64
    s_lshl_b32 s{T0}, s{SI}, 19
    s_lshl_b32 s{T1}, s{T3}, 15
    s_add_u32 s{T0}, s{T0}, s{T1}
    v_add_u32 v{vo}, s{T0}, v25
""")
            continue
        a(f"""
    s_add_u32 s{T3}, s{T2}, {s_}            ; n
    s_lshl_b32 s{SLOT_LDS+s_}, s{T3}, 10
    s_mov_b32 s{SLOT_OFF+s_}, 0
    s_mov_b32 s{srd+3}, 0x00020000
    s_cmp_lt_u32 s{T3}, 30
    s_cbranch_scc0 {lq}
    s_cmp_lt_u32 s{T3}, 23
    s_cselect_b32 s{srd}, s{P_GATE}, s{P_UP}
    s_cselect_b32 s{srd+1}, s{P_GATE+1}, s{P_UP+1}
    s_cselect_b32 s{T0}, 16, 23
    s_sub_u32 s{T3}, s{T3}, s{T0}
    s_mov_b32 s{srd+2}, 7340032
    s_mov_b32 s{SLOT_STR+s_}, 229376
    s_lshl_b32 s{T3}, s{T3}, 6
    v_add_u32 v20, s{T3}, v1                ; slot
    v_mul_u32_u24 v21, 4682, v20
    v_lshrrev_b32 v21, 16, v21              ; rho
    v_mul_u32_u24 v22, 14, v21
    v_sub_u32 v22, v20, v22                 ; c
    v_and_b32 v23, 0x13, v21
    v_and_b32 v24, 4, v21
    v_lshlrev_b32 v24, 1, v24
    v_or_b32 v23, v23, v24
    v_and_b32 v24, 8, v21
    v_lshrrev_b32 v24, 1, v24
    v_or_b32 v23, v23, v24                  ; k
    v_mul_u32_u24 v23, 7168, v23
    v_lshlrev_b32 v22, 4, v22
    v_add_u32 v23, v23, v22
    v_add_u32 v{vo}, s{S224}, v23
    s_branch {le}
{lq}:
    s_mov_b32 s{srd}, s{P_QKV}
    s_mov_b32 s{srd+1}, s{P_QKV+1}
    s_mov_b32 s{srd+2}, 6291456
    s_mov_b32 s{SLOT_STR+s_}, 196608
    s_sub_u32 s{T3}, s{T3}, 30
    s_lshl_b32 s{T3}, s{T3}, 6
    v_add_u32 v20, s{T3}, v1                ; slot
    v_mul_u32_u24 v21, 5462, v20
    v_lshrrev_b32 v21, 16, v21              ; k
    v_mul_u32_u24 v22, 12, v21
    v_sub_u32 v22, v20, v22                 ; c'
    v_lshrrev_b32 v23, 3, v21
    v_and_b32 v23, 1, v23
    v_lshlrev_b32 v23, 1, v23
    v_xor_b32 v22, v22, v23                 ; c
    v_lshrrev_b32 v23, 2, v22               ; part
    v_lshlrev_b32 v23, 11, v23
    v_and_b32 v22, 3, v22
    v_lshlrev_b32 v22, 4, v22
    v_mul_u32_u24 v21, 6144, v21
    v_add_u32 v21, v21, v23
    v_add_u32 v21, v21, v22
    v_add_u32 v{vo}, s{S64}, v21
{le}:
""")
    def dma_one(s, wn):
        srd = SLOT_SRD + 4 * s
        L = [f"s_add_u32 m0, s{SWST}, s{SLOT_LDS+s}", f"s_nop 0",
             f"buffer_load_dwordx4 v{VSLOT+s}, s[{srd}:{srd+3}], s{SLOT_OFF+s} offen lds",
             f"s_add_u32 s{SLOT_OFF+s}, s{SLOT_OFF+s}, s{SLOT_STR+s}"]
        if s == 4:
            if wn == 1:
                return []
            if wn is None:
                lab = a.new("skip")
                L = [f"s_cmp_ge_u32 s{SW}, 4", f"s_cbranch_scc1 {lab}"] + L + [f"{lab}:"]
        return L
    def wst_advance():
        return [f"s_add_u32 s{SWST}, s{SWST}, {STAGE}", f"s_cmp_eq_u32 s{SWST}, {STAGE*NST}", f"s_cselect_b32 s{SWST}, 0, s{SWST}"]
    for st in range(3):
        for s_ in range(5):
            a("\n".join(dma_one(s_, None)))
        a(f"s_add_u32 s{SWST}, s{SWST}, {STAGE}")
    a(f"""
    v_lshrrev_b32 v21, 1, v4
    v_and_b32 v22, 1, v4
    v_xor_b32 v22, v22, v21
    v_lshlrev_b32 v22, 1, v22
    v_or_b32 v22, v22, v21                  ; f(r)
    v_xor_b32 v22, v22, v2
    v_lshlrev_b32 v22, 4, v22
    s_lshl_b32 s{T0}, s{SWM}, 12
    v_lshlrev_b32 v13, 6, v5
    v_add_u32 v13, v13, v22
    v_add_u32 v13, s{T0}, v13
    v_lshrrev_b32 v21, 1, v2                ; g1
    v_and_b32 v22, 1, v2                    ; g0
    v_lshlrev_b32 v15, 4, v21
    v_lshlrev_b32 v16, 2, v22
    v_add_u32 v15, v15, v16
    v_add_u32 v15, v15, v4
    v_mul_u32_u24 v15, 224, v15
    v_lshrrev_b32 v16, 1, v3
    v_lshlrev_b32 v16, 4, v16
    v_and_b32 v17, 1, v3
    v_lshlrev_b32 v17, 3, v17
    v_add_u32 v16, v16, v17
    v_add_u32 v15, v15, v16
    v_lshlrev_b32 v17, 3, v2
    v_add_u32 v17, v17, v4
    v_mul_u32_u24 v17, 192, v17
    v_add_u32 v17, v17, v16
    v_lshlrev_b32 v18, 5, v22
    v_sub_u32 v19, v17, v18                 ; odd
    v_add_u32 v17, v17, v18                 ; even
""")
    LA = int(os.environ.get("K1_LA", "6"))
    if LA:
        a(f"""
    s_lshl_b32 s{T0}, s2, 3
    s_add_u32 s{T0}, s{T0}, s{SW}           ; gw
    v_lshlrev_b32 v20, 11, v1
    v_add_u32 v20, s{T0}, v20
    v_subrev_u32 v21, 5120, v20
    v_min_u32 v21, 2047, v21
    v_lshlrev_b32 v21, 11, v21              ; off
    v_add_u32 v21, {LA*64}, v21
    v_mov_b32 v84, 64
    v_mov_b32 v82, s{P_X}
    v_mov_b32 v83, s{P_X+1}
    v_subrev_u32 v22, 3584, v20
    v_lshlrev_b32 v22, 7, v22
    v_add_u32 v22, {LA*196608}, v22
    v_cmp_gt_u32 vcc, 5120, v20
    v_mov_b32 v23, 196608
    v_mov_b32 v24, s{P_QKV}
    v_mov_b32 v25, s{P_QKV+1}
    v_cndmask_b32 v21, v21, v22, vcc
    v_cndmask_b32 v84, v84, v23, vcc
    v_cndmask_b32 v82, v82, v24, vcc
    v_cndmask_b32 v83, v83, v25, vcc
    v_subrev_u32 v22, 1792, v20
    v_lshlrev_b32 v22, 7, v22
    v_add_u32 v22, {LA*229376}, v22
    v_cmp_gt_u32 vcc, 3584, v20
    v_mov_b32 v23, 229376
    v_mov_b32 v24, s{P_UP}
    v_mov_b32 v25, s{P_UP+1}
    v_cndmask_b32 v21, v21, v22, vcc
    v_cndmask_b32 v84, v84, v23, vcc
    v_cndmask_b32 v82, v82, v24, vcc
    v_cndmask_b32 v83, v83, v25, vcc
    v_lshlrev_b32 v22, 7, v20
    v_add_u32 v22, {LA*229376}, v22
    v_cmp_gt_u32 vcc, 1792, v20
    v_mov_b32 v24, s{P_GATE}
    v_mov_b32 v25, s{P_GATE+1}
    s_nop 0
    v_cndmask_b32 v21, v21, v22, vcc
    v_cndmask_b32 v82, v82, v24, vcc
    v_cndmask_b32 v83, v83, v25, vcc
    v_add_co_u32 v82, vcc, v82, v21
    s_nop 1
    v_addc_co_u32 v83, vcc, 0, v83, vcc
    s_mov_b64 exec, 15
    global_load_dword v85, v[82:83], off
    global_load_dword v85, v[82:83], off
    s_mov_b64 exec, -1
""")
    for r in range(ACC, 256):
        a(f"v_mov_b32 v{r}, 0")
    a(f"""
    s_waitcnt vmcnt({8 + 2 * (LA > 0)})
    s_barrier
    s_cmp_eq_u32 s{SWN}, 0
    s_cbranch_scc0 {name}_wn1
""")

    def gate_loads(rr):
        b = 56 + 16 * rr
        a(f"""
    s_lshl_b32 s{T0}, s{SI}, 8
    s_lshl_b32 s{T1}, s{SJ}, 3
    s_add_u32 s{T0}, s{T0}, s{T1}
    s_lshl_b32 s{T1}, s{SWM}, 1
    s_add_u32 s{T0}, s{T0}, s{T1}
    s_add_u32 s{E_ROW+rr}, s{T0}, {rr}
    s_lshl_b32 s{T0}, s{E_ROW+rr}, 11
    v_lshlrev_b32 v20, 5, v1
    buffer_load_dwordx4 v[{b}:{b+3}], v20, s[{S_X}:{S_X+3}], s{T0} offen
    buffer_load_dwordx4 v[{b+4}:{b+7}], v20, s[{S_X}:{S_X+3}], s{T0} offen offset:16
""")
        if rr == 0:
            a(f"""
    buffer_load_dwordx4 v[88:91], v20, s[{S_GW}:{S_GW+3}], 0 offen
    buffer_load_dwordx4 v[92:95], v20, s[{S_GW}:{S_GW+3}], 0 offen offset:16
""")
    def gate_compute(rr):
        b = 56 + 16 * rr
        a("v_mov_b32 v24, 0")
        for d in range(8):
            a(f"""
    v_lshlrev_b32 v25, 16, v{b+d}
    v_and_b32 v26, 0xffff0000, v{b+d}
    v_lshlrev_b32 v27, 16, v{88+d}
    v_and_b32 v28, 0xffff0000, v{88+d}
    v_mul_f32 v25, v25, v27
    v_mul_f32 v26, v26, v28
    v_cvt_pk_bf16_f32 v25, v25, v26
    v_lshlrev_b32 v26, 16, v25
    v_and_b32 v25, 0xffff0000, v25
    v_add_f32 v24, v24, v26
    v_add_f32 v24, v24, v25
""")
        for off in (0x041F, 0x081F, 0x101F, 0x201F, 0x401F):
            a(f"""
    ds_swizzle_b32 v25, v24 offset:{off}
    s_waitcnt lgkmcnt(0)
    v_add_f32 v24, v24, v25
""")
        a(f"""
    s_nop 0
    v_readlane_b32 s{T0}, v24, 32
    s_nop 1
    v_add_f32 v24, s{T0}, v24
    v_cvt_pk_bf16_f32 v24, v24, v24
    v_lshlrev_b32 v24, 16, v24
    v_mul_f32 v24, 0xbfb8aa3b, v24
    v_exp_f32 v24, v24
    s_nop 0
    v_add_f32 v24, 1.0, v24
    v_rcp_f32 v24, v24
    s_nop 0
    v_cvt_pk_bf16_f32 v24, v24, v24
    v_lshlrev_b32 v24, 16, v24
    s_lshl_b32 s{T0}, s{E_ROW+rr}, 2
    s_add_u32 s{T0}, s{T0}, {G_OFF}
    v_mov_b32 v25, 0
    s_mov_b64 s[{E_EX}:{E_EX+1}], exec
    s_mov_b64 exec, 1
    buffer_store_dword v24, v25, s[{S_WS}:{S_WS+3}], s{T0} offen
    s_mov_b64 exec, s[{E_EX}:{E_EX+1}]
""")

    def frag_desc(wn):
        d = []
        if wn == 0:
            for t in range(5): d.append((16, GATE_R + 32 * t, 1792, 'T'))
            for t in range(5): d.append((16, UP_R + 32 * t, 1792, 'T'))
        else:
            for t in (5, 6): d.append((16, GATE_R + 32 * t, 1792, 'T'))
            for t in (5, 6): d.append((16, UP_R + 32 * t, 1792, 'T'))
            for t in range(6):
                d.append((18 if t % 2 == 0 else 20, QKV_R + 32 * t, 768, 'T' if t < 2 else 'N'))
        return d
    def set_addrs(wn):
        L = [f"v_add_u32 v14, s{SRST}, v13", f"v_add_u32 v16, s{SRST}, v15"]
        if wn == 1:
            L += [f"v_add_u32 v18, s{SRST}, v17", f"v_add_u32 v20, s{SRST}, v19"]
        L += [f"s_add_u32 s{SRST}, s{SRST}, {STAGE}", f"s_cmp_eq_u32 s{SRST}, {STAGE*NST}", f"s_cselect_b32 s{SRST}, 0, s{SRST}"]
        return L
    def rd_b(desc, jj, slot):
        ar, off, sec, _ = desc[jj]
        b = BR + 4 * slot
        return [f"ds_read_b64_tr_b16 v[{b}:{b+1}], v{ar} offset:{off}",
                f"ds_read_b64_tr_b16 v[{b+2}:{b+3}], v{ar} offset:{off+sec}"]
    def rd_a(par):
        return [f"ds_read_b128 v[{AF[par]+4*tm}:{AF[par]+4*tm+3}], v14 offset:{1024*tm}" for tm in range(4)]

    def step(wn, par, dma, vm, barrier, pre, pf=False, touch=False):
        desc = frag_desc(wn)
        if vm is not None:
            a(f"s_waitcnt vmcnt({vm})")
        if barrier:
            a("s_barrier")
        for jj in range(10):
            slot = (jj + 2 * par) % 4
            V1 = os.environ.get("K1_V1", "1") == "1"
            fill = []
            if not V1:
                if jj + 2 < 10:
                    a("\n".join(rd_b(desc, jj + 2, (jj + 2 + 2 * par) % 4)))
                    a("s_waitcnt lgkmcnt(4)")
                elif pre:
                    npar = 1 - par
                    if jj == 8:
                        a("\n".join(set_addrs(wn)))
                        a("\n".join(rd_a(npar)))
                        a("\n".join(rd_b(desc, 0, (0 + 2 * npar) % 4)))
                    else:
                        a("\n".join(rd_b(desc, 1, (1 + 2 * npar) % 4)))
                    a("s_waitcnt lgkmcnt(8)")
                else:
                    a(f"s_waitcnt lgkmcnt({2 if jj == 8 else 0})")
            else:
                npar = 1 - par
                if jj < 9:
                    a("s_waitcnt lgkmcnt(2)")
                else:
                    a(f"s_waitcnt lgkmcnt({6 if pre else 0})")
                if jj + 2 < 10:
                    r_ = rd_b(desc, jj + 2, (jj + 2 + 2 * par) % 4)
                    fill = [[r_[0]], [r_[1]]]
                elif pre and jj == 8:
                    ra = rd_a(npar); rb = rd_b(desc, 0, (0 + 2 * npar) % 4)
                    fill = [set_addrs(wn) + [ra[0]], [ra[1], ra[2]], [ra[3], rb[0]], [rb[1]]]
                elif pre:
                    r_ = rd_b(desc, 1, (1 + 2 * npar) % 4)
                    fill = [[r_[0]], [r_[1]]]
            b = BR + 4 * slot
            for tm in range(4):
                c = acc(tm, jj); x = AF[par] + 4 * tm
                if desc[jj][3] == 'T':
                    a(f"v_mfma_f32_16x16x32_bf16 v[{c}:{c+3}], v[{b}:{b+3}], v[{x}:{x+3}], v[{c}:{c+3}]")
                else:
                    a(f"v_mfma_f32_16x16x32_bf16 v[{c}:{c+3}], v[{x}:{x+3}], v[{b}:{b+3}], v[{c}:{c+3}]")
                if tm < len(fill):
                    a("\n".join(fill[tm]))
            if pf and jj == 0:
                a(f"""
    s_lshl_b32 s{T0}, s2, 3
    s_add_u32 s{T0}, s{T0}, s{SW}
    s_lshl_b32 s{T0}, s{T0}, 10
    v_lshlrev_b32 v80, 4, v1
    v_add_u32 v80, s{T0}, v80
    s_mov_b32 s{SLOT_SRD}, s{P_WD}
    s_mov_b32 s{SLOT_SRD+1}, s{P_WD+1}
    s_mov_b32 s{SLOT_SRD+2}, 7340032
    s_mov_b32 s{SLOT_SRD+4}, s{P_WO}
    s_mov_b32 s{SLOT_SRD+5}, s{P_WO+1}
    s_mov_b32 s{SLOT_SRD+6}, 2097152
    s_mov_b32 s{T0}, 0
""")
            if pf and jj < 4:
                a(f"buffer_load_dwordx4 v[84:87], v80, s[{SLOT_SRD}:{SLOT_SRD+3}], s{T0} offen\ns_add_u32 s{T0}, s{T0}, 0x200000")
            if pf and jj == 4:
                a(f"buffer_load_dwordx4 v[84:87], v80, s[{SLOT_SRD+4}:{SLOT_SRD+7}], 0 offen")
            if dma and jj < 5:
                a("\n".join(dma_one(jj, wn)))
                if jj == 4:
                    a("\n".join(wst_advance()))
                    if touch:
                        lab = a.new("nt")
                        thr = -(-(LA - 2) // 2) if par == 0 else -(-(LA - 1) // 2)
                        a(f"""
    s_mov_b64 exec, 15
    global_load_dword v85, v[82:83], off
    s_cmp_lt_u32 s{SCNT}, {thr}
    s_cbranch_scc1 {lab}
    v_add_co_u32 v82, vcc, v82, v84
    s_nop 1
    v_addc_co_u32 v83, vcc, 0, v83, vcc
{lab}:
    s_mov_b64 exec, -1
""")

    def glu_calc(G, U, tb, d):
        a(f"""
    v_cvt_pk_bf16_f32 v{tb}, v{G}, v{G+1}
    v_cvt_pk_bf16_f32 v{tb+1}, v{G+2}, v{G+3}
    v_cvt_pk_bf16_f32 v{tb+2}, v{U}, v{U+1}
    v_cvt_pk_bf16_f32 v{tb+3}, v{U+2}, v{U+3}
    v_lshlrev_b32 v{tb+4}, 16, v{tb}
    v_lshlrev_b32 v{tb+5}, 16, v{tb+2}
    v_and_b32 v{tb}, 0xffff0000, v{tb}
    v_and_b32 v{tb+2}, 0xffff0000, v{tb+2}
    v_mul_f32 v{tb+4}, v{tb+4}, v{tb+5}
    v_mul_f32 v{tb}, v{tb}, v{tb+2}
    v_lshlrev_b32 v{tb+5}, 16, v{tb+1}
    v_lshlrev_b32 v{tb+2}, 16, v{tb+3}
    v_and_b32 v{tb+1}, 0xffff0000, v{tb+1}
    v_and_b32 v{tb+3}, 0xffff0000, v{tb+3}
    v_mul_f32 v{tb+5}, v{tb+5}, v{tb+2}
    v_mul_f32 v{tb+1}, v{tb+1}, v{tb+3}
    v_cvt_pk_bf16_f32 v{d}, v{tb+4}, v{tb}
    v_cvt_pk_bf16_f32 v{d+1}, v{tb+5}, v{tb+1}
""")
    rot = [0]
    def glu_store(groups, tms):
        for tm in tms:
            a(f"s_add_u32 s{E_T}, s{E_HB}, {tm * 16 * AH_LD}")
            for grp in groups:
                d = 32 + 4 * (rot[0] % 4); rot[0] += 1
                for x, (jg, ju, t) in enumerate(grp):
                    glu_calc(acc(tm, jg), acc(tm, ju), 24, d + 2 * x)
                t = grp[0][2]
                if len(grp) == 2:
                    a(f"""
    s_nop 1
    v_permlane16_swap_b32 v{d}, v{d+2}
    v_permlane16_swap_b32 v{d+1}, v{d+3}
    buffer_store_dwordx4 v[{d}:{d+3}], v19, s[{S_WS}:{S_WS+3}], s{E_T} offen offset:{32*t} {STF}
""")
                else:
                    a(f"buffer_store_dwordx2 v[{d}:{d+1}], v21, s[{S_WS}:{S_WS+3}], s{E_T} offen offset:{32*t} {STF}")

    def phi4(src, dst, t0):
        L = []
        for h in range(2):
            s0, s1 = src + 2 * h, src + 2 * h + 1
            L += [f"v_cvt_pk_bf16_f32 v{t0}, v{s0}, v{s1}",
                  f"v_lshlrev_b32 v{t0+1}, 16, v{t0}",
                  f"v_and_b32 v{t0}, 0xffff0000, v{t0}",
                  f"v_mul_f32 v{t0+2}, 0x3fb8aa3b, v{t0+1}",
                  f"v_mul_f32 v{t0+3}, 0x3fb8aa3b, v{t0}",
                  f"v_min_f32 v{t0+2}, 0, v{t0+2}",
                  f"v_min_f32 v{t0+3}, 0, v{t0+3}",
                  f"v_exp_f32 v{t0+2}, v{t0+2}",
                  f"v_exp_f32 v{t0+3}, v{t0+3}",
                  f"v_max_f32 v{t0+1}, 0, v{t0+1}",
                  f"v_max_f32 v{t0}, 0, v{t0}",
                  f"v_add_f32 v{t0+2}, v{t0+2}, v{t0+1}",
                  f"v_add_f32 v{t0+3}, v{t0+3}, v{t0}",
                  f"v_cvt_pk_bf16_f32 v{t0}, v{t0+2}, v{t0+3}",
                  f"v_lshlrev_b32 v{t0+1}, 16, v{t0}",
                  f"v_and_b32 v{t0}, 0xffff0000, v{t0}",
                  f"v_add_f32 v{t0+1}, 0x358637bd, v{t0+1}",
                  f"v_add_f32 v{t0}, 0x358637bd, v{t0}",
                  f"v_cvt_pk_bf16_f32 v{dst+h}, v{t0+1}, v{t0}"]
        return L

    for wn in (0, 1):
        if wn == 1:
            a.label(f"{name}_wn1")
        desc = frag_desc(wn)
        a("\n".join(set_addrs(wn)))
        a("\n".join(rd_a(0)))
        a("\n".join(rd_b(desc, 0, 0)))
        a("\n".join(rd_b(desc, 1, 1)))
        stamp(a, 1)
        a(f"s_mov_b32 s{SCNT}, 14")
        lp = f"{name}_loop{wn}"
        a.label(lp)
        VM = 5 if wn == 0 else 4
        step(wn, 0, True, VM + 2 * (LA > 0), True, True, touch=LA > 0)
        step(wn, 1, True, VM + 2 * (LA > 0), True, True, touch=LA > 0)
        a(f"""
    s_sub_u32 s{SCNT}, s{SCNT}, 1
    s_cmp_lg_u32 s{SCNT}, 0
    s_cbranch_scc1 {lp}
""")
        step(wn, 0, True, VM + 2 * (LA > 0), True, True)
        step(wn, 1, False, VM + 1 * (LA > 0), True, True, pf=True)
        step(wn, 0, False, 5, True, True)
        step(wn, 1, False, None, False, False)
        stamp(a, 2)
        if wn == 1:
            a("s_setprio 3")
        a(f"""
    s_nop 7
    s_nop 7
    s_barrier
    s_mov_b32 s{S_DBG}, s{P_DBG}
    s_mov_b32 s{S_DBG+1}, s{P_DBG+1}
    s_mov_b32 s{S_DBG+2}, 256
    s_mov_b32 s{S_DBG+3}, 0x00020000
    s_mov_b32 s{S_GW}, s{P_GW}
    s_mov_b32 s{S_GW+1}, s{P_GW+1}
    s_mov_b32 s{S_GW+2}, 2048
    s_mov_b32 s{S_GW+3}, 0x00020000
    s_lshl_b32 s{T0}, s{SI}, 8
    s_lshl_b32 s{T1}, s{SWM}, 6
    s_add_u32 s{T0}, s{T0}, s{T1}
    s_mul_i32 s{E_RB}, s{T0}, {AH_LD}       ; (256i+64wm)*ld
    s_add_u32 s{E_HB}, s{E_RB}, s{S224}
    s_add_u32 s{E_HB}, s{E_HB}, 2048        ; h base
    v_mul_u32_u24 v21, {AH_LD}, v5
    v_lshlrev_b32 v22, 3, v2
    v_add_u32 v21, v21, v22                 ; (l&15)*ld + 8g
    v_mul_u32_u24 v19, {AH_LD}, v5
    v_and_b32 v22, 1, v2
    v_lshlrev_b32 v22, 5, v22
    v_add_u32 v19, v19, v22
    v_lshrrev_b32 v22, 1, v2
    v_lshlrev_b32 v22, 4, v22
    v_add_u32 v19, v19, v22                 ; (l&15)*ld + 32(g&1) + 16(g>>1)
""")
        if wn == 0:
            G0 = [[(0, 5, 0), (1, 6, 1)], [(2, 7, 2), (3, 8, 3)], [(4, 9, 4)]]
            gate_loads(0); gate_loads(1)
            glu_store(G0, [0])
            a("s_barrier")
            glu_store(G0, [1])
            a("s_barrier")
            glu_store(G0, [2, 3])
            a("s_waitcnt vmcnt(12)")
            gate_compute(0); gate_compute(1)
            stamp(a, 3)
            a("s_barrier")
            stamp(a, 4)
            a("s_waitcnt vmcnt(0)")
            stamp(a, 5)
            stamp_dump(a, 6, SW, 0, P_WS, P_WS + 1)
            a(f"s_branch {name}_done")
        else:
            a("v_mov_b32 v48, 0x3f803f80\nv_mov_b32 v49, 0x3f803f80\nv_mov_b32 v50, 0x3f803f80\nv_mov_b32 v51, 0x3f803f80")
            for pp in range(2):
                for dt in range(2):
                    for hh in range(2):
                        a("\n".join(phi4(acc(2 * pp + hh, 6 + dt), 32 + 4 * dt + 2 * hh, 80)))
                for et in range(2):
                    for hh in range(2):
                        s = acc(2 * pp + hh, 8 + et); d = 40 + 4 * et + 2 * hh
                        a(f"v_cvt_pk_bf16_f32 v{d}, v{s}, v{s+1}\nv_cvt_pk_bf16_f32 v{d+1}, v{s+2}, v{s+3}")
                a("s_nop 1")
                for dt in range(2):
                    for et in range(2):
                        c = 56 + 4 * (dt * 2 + et)
                        cc = f"v[{c}:{c+3}]" if pp else "0"
                        a(f"v_mfma_f32_16x16x32_bf16 v[{c}:{c+3}], v[{32+4*dt}:{35+4*dt}], v[{40+4*et}:{43+4*et}], {cc}")
                    c = 72 + 4 * dt
                    cc = f"v[{c}:{c+3}]" if pp else "0"
                    a(f"v_mfma_f32_16x16x32_bf16 v[{c}:{c+3}], v[{32+4*dt}:{35+4*dt}], v[48:51], {cc}")
            a(f"""
    s_nop 7
    s_mul_i32 s{T0}, s{SWM}, 6144
    v_lshlrev_b32 v22, 3, v1                ; lane*8
    v_add_u32 v23, s{T0}, v22
""")
            for p in range(12):
                a(f"ds_write_b64 v23, v[{56+2*p}:{57+2*p}] offset:{512*p}")
            a(f"""
    s_waitcnt lgkmcnt(0)
    s_barrier                                ; B2
    s_mul_i32 s{T0}, s{SWM}, 1536
    v_add_u32 v23, s{T0}, v22
""")
            for p in range(3):
                for w in range(4):
                    a(f"ds_read_b64 v[{32+8*p+2*w}:{33+8*p+2*w}], v23 offset:{w*6144+512*p}")
            a(f"""
    s_lshl_b32 s{T0}, s{SJ}, 3
    s_add_u32 s{T0}, s{T0}, s{SI}
    s_mul_i32 s{T0}, s{T0}, 6144
    s_add_u32 s{T0}, s{T0}, {KVP_OFF}
    s_waitcnt lgkmcnt(0)
""")
            for p in range(3):
                b = 32 + 8 * p
                a(f"""
    v_add_f32 v{b}, v{b}, v{b+2}
    v_add_f32 v{b+1}, v{b+1}, v{b+3}
    v_add_f32 v{b+4}, v{b+4}, v{b+6}
    v_add_f32 v{b+5}, v{b+5}, v{b+7}
    v_add_f32 v{b}, v{b}, v{b+4}
    v_add_f32 v{b+1}, v{b+1}, v{b+5}
    buffer_store_dwordx2 v[{b}:{b+1}], v23, s[{S_WS}:{S_WS+3}], s{T0} offen offset:{512*p} sc1
""")
            lsk = a.new("nosig")
            a(f"""
    s_waitcnt vmcnt(0)
    s_barrier                                ; B3
    s_lshl_b32 s{E_CNT}, s{SJ}, 2
    v_mov_b32 v24, 1
    v_mov_b32 v25, 0
    s_cmp_lg_u32 s{SWM}, 0
    s_cbranch_scc1 {lsk}
    s_mov_b64 s[{E_EX}:{E_EX+1}], exec
    s_mov_b64 exec, 1
    buffer_atomic_add v24, v25, s[{S_DBG}:{S_DBG+3}], s{E_CNT} offen sc1
    s_mov_b64 exec, s[{E_EX}:{E_EX+1}]
{lsk}:
""")
            stamp(a, 3)
            glu_store([[(0, 2, 5), (1, 3, 6)]], range(4))
            for tm in range(4):
                for dt in range(2):
                    a("\n".join(phi4(acc(tm, 4 + dt), 32 + 4 * tm + 2 * dt, 80)))
            lp2 = a.new("poll")
            a(f"""
    v_mov_b32 v25, 0
{lp2}:
    buffer_load_dword v24, v25, s[{S_DBG}:{S_DBG+3}], s{E_CNT} offen sc1
    s_waitcnt vmcnt(0)
    v_readfirstlane_b32 s{T0}, v24
    s_cmp_ge_u32 s{T0}, 8
    s_cbranch_scc1 {lp2}_ok
    s_sleep 2
    s_branch {lp2}
{lp2}_ok:
""")
            stamp(a, 4)
            a(f"""
    s_lshl_b32 s{T0}, s{SJ}, 3
    s_mul_i32 s{T0}, s{T0}, 6144
    s_add_u32 s{T0}, s{T0}, {KVP_OFF}
""")
            for ii in range(8):
                for p in range(3):
                    b = 96 + (p * 8 + ii) * 2
                    a(f"buffer_load_dwordx2 v[{b}:{b+1}], v23, s[{S_WS}:{S_WS+3}], s{T0} offen offset:{512*p} sc1")
                if ii < 7:
                    a(f"s_add_u32 s{T0}, s{T0}, 6144")
            a("s_waitcnt vmcnt(0)")
            for p in range(3):
                b = 96 + p * 16
                for st in (8, 4, 2):
                    for k in range(0, st, 2):
                        a(f"v_add_f32 v{b+k}, v{b+k}, v{b+k+st}\nv_add_f32 v{b+k+1}, v{b+k+1}, v{b+k+st+1}")
                a(f"ds_write_b64 v23, v[{b}:{b+1}] offset:{512*p}")
            a("""
    s_waitcnt lgkmcnt(0)
    s_barrier                                ; B4
""")
            for p in range(12):
                a(f"ds_read_b64 v[{56+2*p}:{57+2*p}], v22 offset:{512*p}")
            a("s_waitcnt lgkmcnt(0)")
            for et in range(2):
                for dt in range(2):
                    s = 56 + 4 * (dt * 2 + et); d = 96 + 4 * et + 2 * dt
                    a(f"v_cvt_pk_bf16_f32 v{d}, v{s}, v{s+1}\nv_cvt_pk_bf16_f32 v{d+1}, v{s+2}, v{s+3}")
            for dt in range(2):
                s = 72 + 4 * dt; d = 104 + 2 * dt
                a(f"v_cvt_pk_bf16_f32 v{d}, v{s}, v{s+1}\nv_cvt_pk_bf16_f32 v{d+1}, v{s+2}, v{s+3}")
            a(f"s_add_u32 s{E_HB}, s{E_RB}, s{S64}\ns_nop 0")
            for tm in range(4):
                for et in range(3):
                    c = 112 + 12 * tm + 4 * et
                    a(f"v_mfma_f32_16x16x32_bf16 v[{c}:{c+3}], v[{96+4*et}:{99+4*et}], v[{32+4*tm}:{35+4*tm}], 0")
            a("s_nop 7")
            for tm in range(4):
                a(f"s_add_u32 s{E_T}, s{E_HB}, {tm * 16 * AH_LD}")
                dn = 112 + 12 * tm + 8
                a(f"""
    v_cvt_pk_bf16_f32 v24, v{dn}, v{dn}
    v_lshlrev_b32 v24, 16, v24
    v_add_f32 v24, 0x358637bd, v24
    v_cvt_pk_bf16_f32 v24, v24, v24
    v_lshlrev_b32 v24, 16, v24
    v_rcp_f32 v24, v24
""")
                d = 72 + 4 * tm
                for et in range(2):
                    c = 112 + 12 * tm + 4 * et
                    tb = 56 + 8 * et
                    a(f"""
    v_cvt_pk_bf16_f32 v{tb}, v{c}, v{c+1}
    v_cvt_pk_bf16_f32 v{tb+1}, v{c+2}, v{c+3}
    v_lshlrev_b32 v{tb+2}, 16, v{tb}
    v_and_b32 v{tb+3}, 0xffff0000, v{tb}
    v_lshlrev_b32 v{tb+4}, 16, v{tb+1}
    v_and_b32 v{tb+5}, 0xffff0000, v{tb+1}
    v_mul_f32 v{tb+2}, v{tb+2}, v24
    v_mul_f32 v{tb+3}, v{tb+3}, v24
    v_mul_f32 v{tb+4}, v{tb+4}, v24
    v_mul_f32 v{tb+5}, v{tb+5}, v24
    v_cvt_pk_bf16_f32 v{d+2*et}, v{tb+2}, v{tb+3}
    v_cvt_pk_bf16_f32 v{d+2*et+1}, v{tb+4}, v{tb+5}
""")
                a(f"""
    s_nop 1
    v_permlane16_swap_b32 v{d}, v{d+2}
    v_permlane16_swap_b32 v{d+1}, v{d+3}
    buffer_store_dwordx4 v[{d}:{d+3}], v19, s[{S_WS}:{S_WS+3}], s{E_T} offen {STF}
""")
    a("s_waitcnt vmcnt(0)")
    stamp(a, 5)
    stamp_dump(a, 6, SW, 0, P_WS, P_WS + 1)
    a.label(f"{name}_done")
    a("s_endpgm")
```

```python
from gen_common import *
import os
NOMFMA = os.environ.get("K2_NOMFMA", "0") == "1"
NODMA = os.environ.get("K2_NODMA", "0") == "1"

ST2 = 32768
NST2 = 4
K2_LDS = ST2 * NST2
ACCB, ACCA = 96, 160
def acc2(base, tm, tn): return base + (tm * 4 + tn) * 4

def gen_k2(a: Asm, name="k2_kernel"):
    a(f""".globl {name}
.p2align 8
.type {name},@function""")
    a.label(name)
    a(f"""
    s_cmp_ge_u32 s2, {os.environ.get("K2_NWG", "256")}
    s_cbranch_scc1 {name}_done
    s_load_dwordx2 s[12:13], s[0:1], 16     ; wo
    s_load_dwordx2 s[14:15], s[0:1], 48     ; w_down
    s_load_dwordx4 s[28:31], s[0:1], 64
    s_load_dwordx2 s[32:33], s[0:1], 80     ; ws
    v_and_b32 v1, 63, v0
    v_lshrrev_b32 v2, 6, v0
    s_nop 0
    v_readfirstlane_b32 s40, v2
    """)
    a(f"""
    s_and_b32 s58, s2, 7                    ; x
    s_lshr_b32 s59, s2, 3                   ; r
    s_lshr_b32 s38, s58, 1
    s_lshl_b32 s38, s38, 2
    s_and_b32 s60, s59, 3
    s_add_u32 s38, s38, s60                 ; mt
    s_and_b32 s39, s58, 1
    s_lshl_b32 s39, s39, 2
    s_lshr_b32 s60, s59, 2
    s_and_b32 s60, s60, 3
    s_add_u32 s39, s39, s60                 ; nt
    s_lshr_b32 s44, s59, 4
    s_xor_b32 s44, s44, 1
    s_lshr_b32 s43, s40, 2                  ; kg
    s_lshr_b32 s41, s40, 1
    s_and_b32 s41, s41, 1                   ; wm
    s_and_b32 s42, s40, 1                   ; wn
    s_waitcnt lgkmcnt(0)
    s_mov_b32 s4, s32
    s_mov_b32 s5, s33
    s_mov_b32 s6, {AH_BYTES}
    s_mov_b32 s7, 0x00020000
    s_mov_b32 s16, s28
    s_mov_b32 s17, s29
    s_mov_b32 s18, 4194304
    s_mov_b32 s19, 0x00020000
    s_mov_b32 s20, s32
    s_mov_b32 s21, s33
    s_mov_b32 s22, {WS_USED}
    s_mov_b32 s23, 0x00020000
    s_mov_b32 s24, s30
    s_mov_b32 s25, s31
    s_mov_b32 s26, 256
    s_mov_b32 s27, 0x00020000
    s_cmp_eq_u32 s44, 0
    s_cselect_b32 s8, s12, s14
    s_cselect_b32 s9, s13, s15
    s_mov_b32 s61, 2097152
    s_mov_b32 s62, 7340032
    s_cselect_b32 s10, s61, s62
    s_mov_b32 s11, 0x00020000
    s_cselect_b32 s47, 0, 40                ; tau
    s_cselect_b32 s45, 0, {40*128}
    s_cselect_b32 s46, 0, {24*131072}
    v_lshrrev_b32 v2, 4, v1                 ; g
    v_and_b32 v3, 3, v1                     ; q
    v_lshrrev_b32 v4, 2, v1
    v_and_b32 v4, 3, v4                     ; r
    v_and_b32 v5, 15, v1
    v_lshrrev_b32 v6, 1, v5
    s_lshl_b32 s58, s43, 2
    v_add_u32 v7, s58, v2
    v_xor_b32 v6, v6, v7
    v_lshlrev_b32 v6, 4, v6
    v_lshlrev_b32 v12, 7, v5
    v_add_u32 v12, v12, v6
    s_lshl_b32 s58, s41, 13
    v_add_u32 v12, s58, v12
    v_lshrrev_b32 v6, 3, v1
    v_lshrrev_b32 v7, 1, v6
    v_and_b32 v8, 7, v1
    v_xor_b32 v9, v8, v7
    v_xor_b32 v9, 4, v9
    v_xor_b32 v8, v8, v7
    v_lshlrev_b32 v8, 4, v8
    v_lshlrev_b32 v9, 4, v9
    v_mul_u32_u24 v6, {AH_LD}, v6
    s_lshl_b32 s58, s38, 7
    s_lshl_b32 s59, s40, 4
    s_add_u32 s58, s58, s59
    s_mul_i32 s58, s58, {AH_LD}             ; (128mt+16w)*ld
    v_add_u32 v6, s58, v6
    v_add_u32 v8, v8, v6
    v_add_u32 v9, v9, v6
    v_add_u32 v9, {8*AH_LD}, v9
    s_lshl_b32 s50, s40, 11
    s_add_u32 s51, s50, 1024
    s_add_u32 s52, s50, 16384
    s_add_u32 s53, s52, 1024
    s_and_b32 s58, s40, 1
    s_lshl_b32 s58, s58, 2
    v_or_b32 v6, s58, v2                    ; (row&3)|(bit<<2)
    v_lshlrev_b32 v6, 1, v6                 ; sigma
    v_xor_b32 v6, v6, v5                    ; c
    v_lshlrev_b32 v6, 4, v6
    v_lshlrev_b32 v7, 11, v2                ; (l>>4)*2048
    v_add_u32 v6, v6, v7
    s_lshl_b32 s58, s40, 14                 ; w*8 rows*2048
    s_lshl_b32 s59, s39, 8                  ; nt*256
    s_add_u32 s58, s58, s59
    v_add_u32 v10, s58, v6
    v_add_u32 v11, 0x2000, v10              ; +4 rows
    v_and_b32 v6, 1, v2
    v_lshlrev_b32 v6, 2, v6
    v_or_b32 v6, v6, v4                     ; s'
    v_lshlrev_b32 v7, 3, v2
    v_add_u32 v7, v7, v4
    s_lshl_b32 s58, s43, 5
    v_add_u32 v7, s58, v7                   ; row
    v_lshlrev_b32 v7, 8, v7
    v_lshrrev_b32 v22, 1, v3
    v_lshlrev_b32 v22, 4, v22
    v_and_b32 v23, 1, v3
    v_lshlrev_b32 v23, 3, v23
    v_add_u32 v7, v7, v22
    v_add_u32 v7, v7, v23
    v_add_u32 v7, 0x4000, v7
    s_lshl_b32 s58, s42, 2
    """)
    stamp(a, 0)
    for tn in range(4):
        a(f"""
    s_add_u32 s59, s58, {tn}
    v_xor_b32 v22, s59, v6
    v_lshlrev_b32 v22, 5, v22
    v_add_u32 v{14+tn}, v7, v22
""")
    a("s_mov_b32 s55, 0\ns_mov_b32 s56, 0")

    def dma_instr(n):
        if os.environ.get("K2_VLOAD", "0") == "1":
            return [f"buffer_load_dwordx4 v[{96+4*n}:{99+4*n}], v{8+n}, s[{4 if n < 2 else 8}:{7 if n < 2 else 11}], s{45 if n < 2 else 46} offen"]
        if n < 2:
            return [f"s_add_u32 m0, s55, s{50+n}", "s_nop 0",
                    f"buffer_load_dwordx4 v{8+n}, s[4:7], s45 offen lds"]
        return [f"s_add_u32 m0, s55, s{50+n}", "s_nop 0",
                f"buffer_load_dwordx4 v{8+n}, s[8:11], s46 offen lds"]
    def dma_advance():
        return ["s_add_u32 s45, s45, 128", "s_add_u32 s46, s46, 131072", "s_add_u32 s47, s47, 1",
                "s_cmp_eq_u32 s47, 16", "s_cselect_b32 s8, s14, s8", "s_cselect_b32 s9, s15, s9",
                "s_cselect_b32 s10, s62, s10", "s_cselect_b32 s46, 0, s46",
                f"s_add_u32 s55, s55, {ST2}", f"s_cmp_eq_u32 s55, {ST2*NST2}", "s_cselect_b32 s55, 0, s55"]
    def set_addrs():
        return ["v_add_u32 v13, s56, v12"] + [f"v_add_u32 v{18+t}, s56, v{14+t}" for t in range(4)] + \
               [f"s_add_u32 s56, s56, {ST2}", f"s_cmp_eq_u32 s56, {ST2*NST2}", "s_cselect_b32 s56, 0, s56"]
    def reads(par):
        A = 32 + 32 * par; B = A + 16
        L = []
        for i in range(4):
            L.append(f"ds_read_b128 v[{A+4*i}:{A+4*i+3}], v13 offset:{2048*i}")
            L.append(f"ds_read_b64_tr_b16 v[{B+4*i}:{B+4*i+1}], v{18+i}")
            L.append(f"ds_read_b64_tr_b16 v[{B+4*i+2}:{B+4*i+3}], v{18+i} offset:1024")
        return L

    for st in range(3):
        for n in range(4):
            a("\n".join(dma_instr(n)))
        a("\n".join(dma_advance()))
    for r in range(ACCB, ACCA + 64):
        a(f"v_mov_b32 v{r}, 0")
    a("s_waitcnt vmcnt(8)\ns_barrier")
    a("\n".join(set_addrs()))
    a("\n".join(reads(0)))

    def step(accb, par, dma, vm, barrier, pre):
        a("s_waitcnt lgkmcnt(0)")
        if vm is not None:
            vmx = int(os.environ.get("K2_VM", "4")) if vm == 4 else vm
            a(f"s_waitcnt vmcnt({vmx})")
        if barrier:
            a("s_barrier")
        fill = []
        if pre:
            a("\n".join(set_addrs()))
            if os.environ.get("K2_NOREAD", "0") != "1":
                fill += [[x] for x in reads(1 - par)]
        if dma and not NODMA:
            d = [dma_instr(n) for n in range(4)]
            d[3] = d[3] + dma_advance()
            fill += d
        A = 32 + 32 * par; B = A + 16
        m = 0
        for tm in range(4):
            for tn in range(4):
                c = acc2(accb, tm, tn)
                if not NOMFMA:
                    a(f"v_mfma_f32_16x16x32_bf16 v[{c}:{c+3}], v[{B+4*tn}:{B+4*tn+3}], v[{A+4*tm}:{A+4*tm+3}], v[{c}:{c+3}]")
                if m < len(fill):
                    a("\n".join(fill[m]))
                m += 1

    stamp(a, 1)
    a(f"""
    s_cmp_eq_u32 s44, 1
    s_mov_b32 s57, 14
    s_cbranch_scc1 {name}_phB
    s_mov_b32 s57, 8
""")
    a.label(f"{name}_loopA")
    step(ACCA, 0, True, 4, True, True)
    step(ACCA, 1, True, 4, True, True)
    a(f"""
    s_sub_u32 s57, s57, 1
    s_cmp_lg_u32 s57, 0
    s_cbranch_scc1 {name}_loopA
    s_mov_b32 s57, 10
""")
    a.label(f"{name}_phB")
    step(ACCB, 0, True, 4, True, True)
    step(ACCB, 1, True, 4, True, True)
    a(f"""
    s_sub_u32 s57, s57, 1
    s_cmp_lg_u32 s57, 0
    s_cbranch_scc1 {name}_phB
""")
    step(ACCB, 0, True, 4, True, True)
    step(ACCB, 1, False, 4, True, True)
    step(ACCB, 0, False, 0, True, True)
    step(ACCB, 1, False, None, False, False)
    stamp(a, 2)
    if os.environ.get("K2_EXP", "0") == "1":
        a("s_waitcnt vmcnt(0)")
        stamp(a, 3); stamp(a, 4); stamp(a, 5)
        stamp_dump(a, 6, 40, 1 << 20, 32, 33)
        a(f"s_branch {name}_done")
    a(f"""
    v_lshlrev_b32 v22, 4, v1                ; lane*16
    s_lshl_b32 s58, s40, 14                 ; w*16384
    v_add_u32 v23, s58, v22
    s_xor_b32 s59, s40, 4
    s_lshl_b32 s59, s59, 14
    v_add_u32 v24, s59, v22
    s_lshl_b32 s63, s38, 3
    s_add_u32 s63, s63, s39
    s_lshl_b32 s64, s63, 16                 ; tile*65536
    s_lshl_b32 s59, s40, 13
    s_add_u32 s64, s64, s59
    s_add_u32 s64, s64, {P2_OFF}
    s_lshr_b32 s65, s63, 5
    s_lshl_b32 s65, s65, 2
    s_and_b32 s66, s63, 31
    s_lshl_b32 s66, 1, s66
    v_mov_b32 v25, 0
    s_cmp_eq_u32 s44, 0
    s_cbranch_scc1 {name}_cons
    s_barrier
    s_cmp_eq_u32 s43, 0
    s_cbranch_scc0 {name}_p1
""")
    def exchange(bases, keep, give):
        q = 0
        for base in bases:
            for tm in give:
                for tn in range(4):
                    c = acc2(base, tm, tn)
                    a(f"ds_write_b128 v23, v[{c}:{c+3}] offset:{1024*q}")
                    q += 1
        a("s_waitcnt lgkmcnt(0)\ns_barrier")
        q = 0
        for base in bases:
            for tm in give:
                for tn in range(4):
                    c = acc2(base, tm, tn)
                    a(f"ds_read_b128 v[{c}:{c+3}], v24 offset:{1024*q}")
                    q += 1
        q = 0
        for base in bases:
            for x in range(2):
                for tn in range(4):
                    a(f"s_waitcnt lgkmcnt({8*len(bases)-1-q})")
                    q += 1
                    c = acc2(base, keep[x], tn); d = acc2(base, give[x], tn)
                    for r in range(4):
                        a(f"v_add_f32 v{c+r}, v{c+r}, v{d+r}")
    for kg in range(2):
        if kg == 1:
            a.label(f"{name}_p1")
        keep = (0, 1) if kg == 0 else (2, 3)
        give = (2, 3) if kg == 0 else (0, 1)
        exchange([ACCB], keep, give)
        q = 0
        for tm in keep:
            for tn in range(4):
                c = acc2(ACCB, tm, tn)
                a(f"buffer_store_dwordx4 v[{c}:{c+3}], v22, s[20:23], s64 offen offset:{1024*(q%4)} sc1")
                q += 1
                if q == 4:
                    a("s_add_u32 s64, s64, 4096")
        a(f"""
    s_waitcnt vmcnt(0)
    s_barrier
    s_cmp_lg_u32 s40, 0
    s_cbranch_scc1 {name}_done
    v_mov_b32 v24, s66
    s_mov_b64 exec, 1
    buffer_atomic_or v24, v25, s[24:27], s65 offen sc1
    s_branch {name}_done
""")
    a.label(f"{name}_cons")
    lp = a.new("poll")
    a(f"""
{lp}:
    buffer_load_dword v26, v25, s[24:27], s65 offen sc1
    s_waitcnt vmcnt(0)
    v_readfirstlane_b32 s58, v26
    s_and_b32 s58, s58, s66
    s_cbranch_scc1 {lp}_ok
    s_sleep 2
    s_branch {lp}
{lp}_ok:
""")
    stamp(a, 3)
    for q in range(8):
        a(f"buffer_load_dwordx4 v[{224+4*q}:{227+4*q}], v22, s[20:23], s64 offen offset:{1024*(q%4)} sc1")
        if q == 3:
            a("s_add_u32 s64, s64, 4096")
    a(f"""
    s_lshl_b32 s58, s38, 7
    s_lshl_b32 s59, s41, 6
    s_add_u32 s58, s58, s59
    s_lshl_b32 s59, s43, 5
    s_add_u32 s58, s58, s59
    s_lshl_b32 s59, s58, 2
    s_add_u32 s59, s59, {G_OFF}
    v_lshlrev_b32 v26, 2, v5
    buffer_load_dword v28, v26, s[20:23], s59 offen
    buffer_load_dword v29, v26, s[20:23], s59 offen offset:64
    s_lshl_b32 s67, s58, 11                 ; token*2048
    s_lshl_b32 s59, s39, 8
    s_add_u32 s67, s67, s59
    s_lshl_b32 s59, s42, 7
    s_add_u32 s67, s67, s59
    v_lshlrev_b32 v26, 11, v5
    v_and_b32 v27, 1, v2
    v_lshlrev_b32 v27, 5, v27
    v_add_u32 v26, v26, v27
    v_lshrrev_b32 v27, 1, v2
    v_lshlrev_b32 v27, 4, v27
    v_add_u32 v26, v26, v27                 ; (l&15)*2048 + 32(g&1) + 16(g>>1)
    s_barrier
    s_cmp_eq_u32 s43, 0
    s_cbranch_scc0 {name}_kg1
""")
    for kg in range(2):
        if kg == 1:
            a.label(f"{name}_kg1")
        keep = (0, 1) if kg == 0 else (2, 3)
        give = (2, 3) if kg == 0 else (0, 1)
        exchange([ACCB, ACCA], keep, give)
        stamp(a, 4)
        a("s_waitcnt vmcnt(0)")
        a("""
    v_sub_f32 v30, 1.0, v28
    v_sub_f32 v31, 1.0, v29
    v_cvt_pk_bf16_f32 v30, v30, v31
    v_and_b32 v31, 0xffff0000, v30
    v_lshlrev_b32 v30, 16, v30
""")
        for x in range(2):
            if x == 1:
                a("s_add_u32 s67, s67, 32768")
            for tn in range(4):
                cb = acc2(ACCB, keep[x], tn); cp = 224 + 4 * (4 * x + tn); ca = acc2(ACCA, keep[x], tn)
                tb = 32 + 16 * (tn % 2)
                dd = 64 + 4 * (2 * x + (tn >> 1))
                for r in range(4):
                    a(f"v_add_f32 v{cb+r}, v{cb+r}, v{cp+r}")
                a(f"""
    v_cvt_pk_bf16_f32 v{tb}, v{ca}, v{ca+1}
    v_cvt_pk_bf16_f32 v{tb+1}, v{ca+2}, v{ca+3}
    v_cvt_pk_bf16_f32 v{tb+2}, v{cb}, v{cb+1}
    v_cvt_pk_bf16_f32 v{tb+3}, v{cb+2}, v{cb+3}
    v_lshlrev_b32 v{tb+4}, 16, v{tb}
    v_and_b32 v{tb+5}, 0xffff0000, v{tb}
    v_lshlrev_b32 v{tb+6}, 16, v{tb+1}
    v_and_b32 v{tb+7}, 0xffff0000, v{tb+1}
    v_lshlrev_b32 v{tb+8}, 16, v{tb+2}
    v_and_b32 v{tb+9}, 0xffff0000, v{tb+2}
    v_lshlrev_b32 v{tb+10}, 16, v{tb+3}
    v_and_b32 v{tb+11}, 0xffff0000, v{tb+3}
    v_mul_f32 v{tb+4}, v{28+x}, v{tb+4}
    v_mul_f32 v{tb+5}, v{28+x}, v{tb+5}
    v_mul_f32 v{tb+6}, v{28+x}, v{tb+6}
    v_mul_f32 v{tb+7}, v{28+x}, v{tb+7}
    v_mul_f32 v{tb+8}, v{30+x}, v{tb+8}
    v_mul_f32 v{tb+9}, v{30+x}, v{tb+9}
    v_mul_f32 v{tb+10}, v{30+x}, v{tb+10}
    v_mul_f32 v{tb+11}, v{30+x}, v{tb+11}
    v_cvt_pk_bf16_f32 v{tb}, v{tb+4}, v{tb+5}
    v_cvt_pk_bf16_f32 v{tb+1}, v{tb+6}, v{tb+7}
    v_cvt_pk_bf16_f32 v{tb+2}, v{tb+8}, v{tb+9}
    v_cvt_pk_bf16_f32 v{tb+3}, v{tb+10}, v{tb+11}
    v_lshlrev_b32 v{tb+4}, 16, v{tb}
    v_and_b32 v{tb+5}, 0xffff0000, v{tb}
    v_lshlrev_b32 v{tb+6}, 16, v{tb+1}
    v_and_b32 v{tb+7}, 0xffff0000, v{tb+1}
    v_lshlrev_b32 v{tb+8}, 16, v{tb+2}
    v_and_b32 v{tb+9}, 0xffff0000, v{tb+2}
    v_lshlrev_b32 v{tb+10}, 16, v{tb+3}
    v_and_b32 v{tb+11}, 0xffff0000, v{tb+3}
    v_add_f32 v{tb+4}, v{tb+4}, v{tb+8}
    v_add_f32 v{tb+5}, v{tb+5}, v{tb+9}
    v_add_f32 v{tb+6}, v{tb+6}, v{tb+10}
    v_add_f32 v{tb+7}, v{tb+7}, v{tb+11}
    v_cvt_pk_bf16_f32 v{dd+2*(tn&1)}, v{tb+4}, v{tb+5}
    v_cvt_pk_bf16_f32 v{dd+2*(tn&1)+1}, v{tb+6}, v{tb+7}
""")
                if tn & 1:
                    a(f"""
    s_nop 1
    v_permlane16_swap_b32 v{dd}, v{dd+2}
    v_permlane16_swap_b32 v{dd+1}, v{dd+3}
    buffer_store_dwordx4 v[{dd}:{dd+3}], v26, s[16:19], s67 offen offset:{32*(tn-1)}
""")
        a("s_waitcnt vmcnt(0)")
        stamp(a, 5)
        stamp_dump(a, 6, 40, 1 << 20, 32, 33)
        a(f"s_branch {name}_done")
    a.label(f"{name}_done")
    a("s_endpgm")
```

```python
from gen_common import *
import os

ST2 = 32768
NST2 = 4
K2_LDS = ST2 * NST2
K2_THREADS = 256
ACCB, ACCA = 96, 160
NC = int(os.environ.get("K2_NC", "39"))
def acc2(base, tm, tn): return base + (tm * 4 + tn) * 4

def gen_k2(a: Asm, name="k2_kernel"):
    a(f""".globl {name}
.p2align 8
.type {name},@function""")
    a.label(name)
    a(f"""
    s_cmp_ge_u32 s2, 256
    s_cbranch_scc1 {name}_done
    s_load_dwordx2 s[12:13], s[0:1], 16     ; wo
    s_load_dwordx2 s[14:15], s[0:1], 48     ; w_down
    s_load_dwordx4 s[28:31], s[0:1], 64
    s_load_dwordx2 s[32:33], s[0:1], 80     ; ws
    v_and_b32 v1, 63, v0
    v_lshrrev_b32 v2, 6, v0
    s_nop 0
    v_readfirstlane_b32 s40, v2
    s_and_b32 s58, s2, 7                    ; x
    s_lshr_b32 s59, s2, 3                   ; r
    s_lshr_b32 s38, s58, 1
    s_lshl_b32 s38, s38, 2
    s_and_b32 s60, s59, 3
    s_add_u32 s38, s38, s60                 ; mt
    s_and_b32 s39, s58, 1
    s_lshl_b32 s39, s39, 2
    s_lshr_b32 s60, s59, 2
    s_and_b32 s60, s60, 3
    s_add_u32 s39, s39, s60                 ; nt
    s_lshr_b32 s44, s59, 4
    s_xor_b32 s44, s44, 1
    s_lshr_b32 s41, s40, 1                  ; wm
    s_and_b32 s42, s40, 1                   ; wn
    v_lshrrev_b32 v2, 4, v1                 ; g
    v_and_b32 v3, 3, v1                     ; q
    v_lshrrev_b32 v4, 2, v1
    v_and_b32 v4, 3, v4                     ; r
    v_and_b32 v5, 15, v1
    v_lshrrev_b32 v6, 3, v1
    v_and_b32 v7, 7, v1
    v_xor_b32 v7, v7, v2
    v_xor_b32 v28, 4, v7
    v_lshlrev_b32 v7, 4, v7
    v_lshlrev_b32 v28, 4, v28
    v_mul_u32_u24 v6, {AH_LD}, v6
    s_lshl_b32 s58, s38, 7
    s_lshl_b32 s59, s40, 5
    s_add_u32 s58, s58, s59
    s_mul_i32 s58, s58, {AH_LD}             ; (128mt+32w)*ld
    v_add_u32 v6, s58, v6
    v_add_u32 v8, v7, v6
    v_add_u32 v9, v28, v6
    v_add_u32 v9, {8*AH_LD}, v9
    v_add_u32 v10, {16*AH_LD}, v8
    v_add_u32 v11, {16*AH_LD}, v9
    s_lshl_b32 s50, s40, 12
    s_add_u32 s52, s50, 16384
    v_lshlrev_b32 v6, 1, v2
    v_xor_b32 v6, v6, v5
    v_xor_b32 v7, 8, v6
    v_lshlrev_b32 v6, 4, v6
    v_lshlrev_b32 v7, 4, v7
    v_lshlrev_b32 v28, 11, v2               ; (l>>4)*2048
    s_lshl_b32 s58, s40, 15                 ; w*16 rows*2048
    s_lshl_b32 s59, s39, 8                  ; nt*256
    s_add_u32 s58, s58, s59
    v_add_u32 v28, s58, v28
    v_add_u32 v12, v6, v28
    v_add_u32 v13, 0x2000, v12
    v_add_u32 v14, v7, v28
    v_add_u32 v14, 0x4000, v14
    v_add_u32 v15, 0x2000, v14
    s_waitcnt lgkmcnt(0)
    s_mov_b32 s4, s32
    s_mov_b32 s5, s33
    s_mov_b32 s6, {AH_BYTES}
    s_mov_b32 s7, 0x00020000
    s_cmp_eq_u32 s44, 0
    s_cselect_b32 s8, s12, s14
    s_cselect_b32 s9, s13, s15
    s_mov_b32 s61, 2097152
    s_mov_b32 s62, 7340032
    s_cselect_b32 s10, s61, s62
    s_mov_b32 s11, 0x00020000
    s_cselect_b32 s47, 0, {NC}              ; tau
    s_cselect_b32 s45, 0, {NC*128}
    s_cselect_b32 s46, 0, {(NC-16)*131072}
    s_mov_b32 s55, 0
    s_mov_b32 s56, 0
    """)
    stamp(a, 0)

    def dma_instr(n):
        if n < 4:
            return [f"s_add_u32 m0, s55, s50", f"s_add_u32 m0, m0, {1024*n}" if n else "s_nop 0", "s_nop 0",
                    f"buffer_load_dwordx4 v{8+n}, s[4:7], s45 offen lds"]
        return [f"s_add_u32 m0, s55, s52", f"s_add_u32 m0, m0, {1024*(n-4)}" if n > 4 else "s_nop 0", "s_nop 0",
                f"buffer_load_dwordx4 v{8+n}, s[8:11], s46 offen lds"]
    def dma_advance():
        return ["s_add_u32 s45, s45, 128", "s_add_u32 s46, s46, 131072", "s_add_u32 s47, s47, 1",
                "s_cmp_eq_u32 s47, 16", "s_cselect_b32 s8, s14, s8", "s_cselect_b32 s9, s15, s9",
                "s_cselect_b32 s10, s62, s10", "s_cselect_b32 s46, 0, s46",
                f"s_add_u32 s55, s55, {ST2}", f"s_cmp_eq_u32 s55, {ST2*NST2}", "s_cselect_b32 s55, 0, s55"]
    for st in range(3):
        for n in range(8):
            a("\n".join(dma_instr(n)))
        a("\n".join(dma_advance()))
    a(f"""
    s_mov_b32 s16, s28
    s_mov_b32 s17, s29
    s_mov_b32 s18, 4194304
    s_mov_b32 s19, 0x00020000
    s_mov_b32 s20, s32
    s_mov_b32 s21, s33
    s_mov_b32 s22, {WS_USED}
    s_mov_b32 s23, 0x00020000
    s_mov_b32 s24, s30
    s_mov_b32 s25, s31
    s_mov_b32 s26, 256
    s_mov_b32 s27, 0x00020000
    v_lshrrev_b32 v6, 1, v5
    v_xor_b32 v6, v6, v2
    v_xor_b32 v7, 4, v6
    v_lshlrev_b32 v6, 4, v6
    v_lshlrev_b32 v7, 4, v7
    v_lshlrev_b32 v16, 7, v5
    s_lshl_b32 s58, s41, 13
    v_add_u32 v16, s58, v16
    v_add_u32 v17, v16, v7
    v_add_u32 v16, v16, v6
    v_and_b32 v6, 1, v2
    v_lshlrev_b32 v6, 2, v6
    v_or_b32 v6, v6, v4                     ; s'
    v_lshlrev_b32 v7, 3, v2
    v_add_u32 v7, v7, v4
    v_lshlrev_b32 v7, 8, v7
    v_lshrrev_b32 v28, 1, v3
    v_lshlrev_b32 v28, 4, v28
    v_and_b32 v29, 1, v3
    v_lshlrev_b32 v29, 3, v29
    v_add_u32 v7, v7, v28
    v_add_u32 v7, v7, v29
    v_add_u32 v7, 0x4000, v7
    s_lshl_b32 s58, s42, 2
    """)
    for tn in range(4):
        a(f"""
    s_add_u32 s59, s58, {tn}
    v_xor_b32 v28, s59, v6
    v_lshlrev_b32 v28, 5, v28
    v_add_u32 v{20+tn}, v7, v28
""")
    def set_addrs():
        return ["v_add_u32 v18, s56, v16", "v_add_u32 v19, s56, v17"] + [f"v_add_u32 v{24+t}, s56, v{20+t}" for t in range(4)] + \
               [f"s_add_u32 s56, s56, {ST2}", f"s_cmp_eq_u32 s56, {ST2*NST2}", "s_cselect_b32 s56, 0, s56"]
    def reads(hk):
        A = 32 + 32 * hk; B = A + 16
        L = []
        for i in range(4):
            L.append(f"ds_read_b128 v[{A+4*i}:{A+4*i+3}], v{18+hk} offset:{2048*i}")
            L.append(f"ds_read_b64_tr_b16 v[{B+4*i}:{B+4*i+1}], v{24+i} offset:{8192*hk}")
            L.append(f"ds_read_b64_tr_b16 v[{B+4*i+2}:{B+4*i+3}], v{24+i} offset:{8192*hk+1024}")
        return L
    for r in range(ACCB, ACCA + 64):
        a(f"v_mov_b32 v{r}, 0")
    a("s_waitcnt vmcnt(16)\ns_barrier")
    a("\n".join(set_addrs()))
    a("\n".join(reads(0)))

    def sub(accb, hk, fill):
        A = 32 + 32 * hk; B = A + 16
        m = 0
        for tm in range(4):
            for tn in range(4):
                c = acc2(accb, tm, tn)
                a(f"v_mfma_f32_16x16x32_bf16 v[{c}:{c+3}], v[{B+4*tn}:{B+4*tn+3}], v[{A+4*tm}:{A+4*tm+3}], v[{c}:{c+3}]")
                if m < len(fill):
                    a("\n".join(fill[m]))
                m += 1
    def step(accb, dma, vm, barrier, pre):
        a("s_waitcnt lgkmcnt(0)")
        if vm is not None:
            a(f"s_waitcnt vmcnt({vm})")
        if barrier:
            a("s_barrier")
        mode = os.environ.get("K2_SCHED", "1")
        R = reads(1)
        if mode == "0":
            fill = [[x] for x in R]
            if dma:
                fill += [dma_instr(n) for n in range(4)]
        else:
            fill = [[x] for x in R] + [[] for _ in range(4)]
            if dma:
                for n in range(8):
                    fill[2 * n] = fill[2 * n] + dma_instr(n)
                fill[15] = fill[15] + dma_advance()
        sub(accb, 0, fill)
        a("s_waitcnt lgkmcnt(0)")
        fill = []
        if pre:
            a("\n".join(set_addrs()))
            fill += [[x] for x in reads(0)]
        if dma and mode == "0":
            d = [dma_instr(n) for n in range(4, 8)]
            d[3] = d[3] + dma_advance()
            fill += d
        sub(accb, 1, fill)

    stamp(a, 1)
    a(f"""
    s_cmp_eq_u32 s44, 1
    s_mov_b32 s57, {72-NC-3}
    s_cbranch_scc1 {name}_phB
    s_mov_b32 s57, 16
""")
    a.label(f"{name}_loopA")
    step(ACCA, True, 8, True, True)
    a(f"""
    s_sub_u32 s57, s57, 1
    s_cmp_lg_u32 s57, 0
    s_cbranch_scc1 {name}_loopA
    s_mov_b32 s57, {NC-16-3}
""")
    a.label(f"{name}_phB")
    step(ACCB, True, 8, True, True)
    a(f"""
    s_sub_u32 s57, s57, 1
    s_cmp_lg_u32 s57, 0
    s_cbranch_scc1 {name}_phB
""")
    step(ACCB, False, 8, True, True)
    step(ACCB, False, 0, True, True)
    step(ACCB, False, None, False, False)
    stamp(a, 2)
    a(f"""
    v_lshlrev_b32 v22, 4, v1                ; lane*16
    s_lshl_b32 s63, s38, 3
    s_add_u32 s63, s63, s39
    s_lshl_b32 s64, s63, 16                 ; tile*65536
    s_lshl_b32 s59, s40, 14
    s_add_u32 s64, s64, s59
    s_add_u32 s64, s64, {P2_OFF}
    s_lshr_b32 s65, s63, 5
    s_lshl_b32 s65, s65, 2
    s_and_b32 s66, s63, 31
    s_lshl_b32 s66, 1, s66
    v_mov_b32 v25, 0
    s_cmp_eq_u32 s44, 0
    s_cbranch_scc1 {name}_cons
""")
    for q in range(16):
        c = ACCB + 4 * q
        a(f"buffer_store_dwordx4 v[{c}:{c+3}], v22, s[20:23], s64 offen offset:{1024*(q%4)} sc1")
        if q % 4 == 3:
            a("s_add_u32 s64, s64, 4096")
    a(f"""
    s_waitcnt vmcnt(0)
    s_barrier
    s_cmp_lg_u32 s40, 0
    s_cbranch_scc1 {name}_done
    v_mov_b32 v24, s66
    s_mov_b64 exec, 1
    buffer_atomic_or v24, v25, s[24:27], s65 offen sc1
    s_branch {name}_done
""")
    a.label(f"{name}_cons")
    lp = a.new("poll")
    a(f"""
    s_lshl_b32 s58, s38, 7
    s_lshl_b32 s59, s41, 6
    s_add_u32 s58, s58, s59
    s_lshl_b32 s59, s58, 2
    s_add_u32 s59, s59, {G_OFF}
    v_lshlrev_b32 v26, 2, v5
    buffer_load_dword v8, v26, s[20:23], s59 offen
    buffer_load_dword v9, v26, s[20:23], s59 offen offset:64
    buffer_load_dword v10, v26, s[20:23], s59 offen offset:128
    buffer_load_dword v11, v26, s[20:23], s59 offen offset:192
    s_lshl_b32 s67, s58, 11                 ; token*2048
    s_lshl_b32 s59, s39, 8
    s_add_u32 s67, s67, s59
    s_lshl_b32 s59, s42, 7
    s_add_u32 s67, s67, s59
    v_lshlrev_b32 v26, 11, v5
    v_and_b32 v27, 1, v2
    v_lshlrev_b32 v27, 5, v27
    v_add_u32 v26, v26, v27
    v_lshrrev_b32 v27, 1, v2
    v_lshlrev_b32 v27, 4, v27
    v_add_u32 v26, v26, v27                 ; (l&15)*2048 + 32(g&1) + 16(g>>1)
{lp}:
    buffer_load_dword v24, v25, s[24:27], s65 offen sc1
    s_waitcnt vmcnt(0)
    v_readfirstlane_b32 s58, v24
    s_and_b32 s58, s58, s66
    s_cbranch_scc1 {lp}_ok
    s_sleep 2
    s_branch {lp}
{lp}_ok:
""")
    stamp(a, 3)
    for q in range(16):
        a(f"buffer_load_dwordx4 v[{32+4*q}:{35+4*q}], v22, s[20:23], s64 offen offset:{1024*(q%4)} sc1")
        if q % 4 == 3:
            a("s_add_u32 s64, s64, 4096")
    for tm in range(4):
        a(f"""
    v_sub_f32 v{12+tm}, 1.0, v{8+tm}
    v_cvt_pk_bf16_f32 v{12+tm}, v{12+tm}, v{12+tm}
    v_lshlrev_b32 v{12+tm}, 16, v{12+tm}
""")
    for tm in range(4):
        for tn in range(4):
            ca = acc2(ACCA, tm, tn)
            a(f"""
    v_cvt_pk_bf16_f32 v28, v{ca}, v{ca+1}
    v_cvt_pk_bf16_f32 v29, v{ca+2}, v{ca+3}
    v_lshlrev_b32 v{ca}, 16, v28
    v_and_b32 v{ca+1}, 0xffff0000, v28
    v_lshlrev_b32 v{ca+2}, 16, v29
    v_and_b32 v{ca+3}, 0xffff0000, v29
    v_mul_f32 v{ca}, v{8+tm}, v{ca}
    v_mul_f32 v{ca+1}, v{8+tm}, v{ca+1}
    v_mul_f32 v{ca+2}, v{8+tm}, v{ca+2}
    v_mul_f32 v{ca+3}, v{8+tm}, v{ca+3}
    v_cvt_pk_bf16_f32 v28, v{ca}, v{ca+1}
    v_cvt_pk_bf16_f32 v29, v{ca+2}, v{ca+3}
    v_lshlrev_b32 v{ca}, 16, v28
    v_and_b32 v{ca+1}, 0xffff0000, v28
    v_lshlrev_b32 v{ca+2}, 16, v29
    v_and_b32 v{ca+3}, 0xffff0000, v29
""")
    stamp(a, 4)
    for tm in range(4):
        if tm:
            a("s_add_u32 s67, s67, 32768")
        for tn in range(4):
            q = tm * 4 + tn
            cb = acc2(ACCB, tm, tn); cp = 32 + 4 * q; ca = acc2(ACCA, tm, tn)
            dd = 224 + 4 * (q // 2 % 4)
            a(f"""
    s_waitcnt vmcnt({15 - q + (q // 2)})
    v_add_f32 v{cb}, v{cb}, v{cp}
    v_add_f32 v{cb+1}, v{cb+1}, v{cp+1}
    v_add_f32 v{cb+2}, v{cb+2}, v{cp+2}
    v_add_f32 v{cb+3}, v{cb+3}, v{cp+3}
    v_cvt_pk_bf16_f32 v28, v{cb}, v{cb+1}
    v_cvt_pk_bf16_f32 v29, v{cb+2}, v{cb+3}
    v_lshlrev_b32 v{cb}, 16, v28
    v_and_b32 v{cb+1}, 0xffff0000, v28
    v_lshlrev_b32 v{cb+2}, 16, v29
    v_and_b32 v{cb+3}, 0xffff0000, v29
    v_mul_f32 v{cb}, v{12+tm}, v{cb}
    v_mul_f32 v{cb+1}, v{12+tm}, v{cb+1}
    v_mul_f32 v{cb+2}, v{12+tm}, v{cb+2}
    v_mul_f32 v{cb+3}, v{12+tm}, v{cb+3}
    v_cvt_pk_bf16_f32 v28, v{cb}, v{cb+1}
    v_cvt_pk_bf16_f32 v29, v{cb+2}, v{cb+3}
    v_lshlrev_b32 v{cb}, 16, v28
    v_and_b32 v{cb+1}, 0xffff0000, v28
    v_lshlrev_b32 v{cb+2}, 16, v29
    v_and_b32 v{cb+3}, 0xffff0000, v29
    v_add_f32 v{cb}, v{cb}, v{ca}
    v_add_f32 v{cb+1}, v{cb+1}, v{ca+1}
    v_add_f32 v{cb+2}, v{cb+2}, v{ca+2}
    v_add_f32 v{cb+3}, v{cb+3}, v{ca+3}
    v_cvt_pk_bf16_f32 v{dd+2*(tn&1)}, v{cb}, v{cb+1}
    v_cvt_pk_bf16_f32 v{dd+2*(tn&1)+1}, v{cb+2}, v{cb+3}
""")
            if tn & 1:
                a(f"""
    s_nop 1
    v_permlane16_swap_b32 v{dd}, v{dd+2}
    v_permlane16_swap_b32 v{dd+1}, v{dd+3}
    buffer_store_dwordx4 v[{dd}:{dd+3}], v26, s[16:19], s67 offen offset:{32*(tn-1)}
""")
    a("s_waitcnt vmcnt(0)")
    stamp(a, 5)
    stamp_dump(a, 6, 40, 1 << 20, 32, 33)
    a.label(f"{name}_done")
    a("s_endpgm")
```

```python
from gen_common import *
import gen_k1, sys, os
if os.environ.get('K2_OLD', '0') == '1':
    import gen_k2
    K2T = 512
else:
    import gen_k2b as gen_k2
    K2T = 256
HDR = open("gated_mix__linear_attn_block__glu_gated_bilinear__prompt.s.ref").read().split("; Override launch")[0]
a = Asm()
hdr = HDR
hdr += f"; @launch kernel=k1_kernel grid=(256,1,1) block=(512,1,1) lds={gen_k1.K1_LDS}\n"
hdr += f"; @launch kernel=k2_kernel grid=(256,1,1) block=({K2T},1,1) lds={gen_k2.K2_LDS}\n"
hdr += '.amdgcn_target "amdgcn-amd-amdhsa--gfx950"\n.text\n'
gen_k1.gen_k1(a)
gen_k2.gen_k2(a)
txt = hdr + a.text() + '.section .rodata,"a"\n.p2align 6\n' + kd("k1_kernel", 256) + ".p2align 6\n" + kd("k2_kernel", 256)
out = sys.argv[1] if len(sys.argv) > 1 else "gated_mix__linear_attn_block__glu_gated_bilinear__prompt.s"
open(out, "w").write(txt)
```

```python
class Asm:
    def __init__(self):
        self.lines = []
        self.uid = 0
    def __call__(self, s):
        for ln in s.split("\n"):
            ln = ln.strip()
            if ln:
                self.lines.append("    " + ln if not ln.endswith(":") else ln)
    def label(self, name):
        self.lines.append(name + ":")
    def new(self, p="L"):
        self.uid += 1
        return f"{p}_{self.uid}"
    def text(self):
        return "\n".join(self.lines) + "\n"

def vr(b, n):
    return f"v[{b}:{b+n-1}]" if n > 1 else f"v{b}"
def sr(b, n):
    return f"s[{b}:{b+n-1}]" if n > 1 else f"s{b}"

AH_OFF = 0
AH_LD = 4608 * 2
AH_BYTES = 2048 * AH_LD
KVP_OFF = AH_BYTES
KVP_BYTES = 32 * 8 * 24 * 64 * 4
G_OFF = KVP_OFF + KVP_BYTES
G_BYTES = 2048 * 4
P2_OFF = G_OFF + G_BYTES
P2_BYTES = 128 * 128 * 128 * 4
TS_BASE = P2_OFF + P2_BYTES
WS_USED = TS_BASE + 256

def kd(name, vgpr, sgpr=102, accum=None):
    if accum is None:
        accum = (vgpr + 3) // 4 * 4
    return f""".amdhsa_kernel {name}
  .amdhsa_next_free_vgpr {vgpr}
  .amdhsa_next_free_sgpr {sgpr}
  .amdhsa_accum_offset {accum}
  .amdhsa_group_segment_fixed_size 0
  .amdhsa_kernarg_size 88
  .amdhsa_user_sgpr_count 2
  .amdhsa_user_sgpr_kernarg_segment_ptr 1
  .amdhsa_system_sgpr_workgroup_id_x 1
.end_amdhsa_kernel
"""

DIAG_OFF = 200 * 1024 * 1024
import os
DIAG = os.environ.get("DIAG", "0") == "1"
def stamp(a, i):
    if DIAG:
        if i == 6:
            a("s_memrealtime s[100:101]\ns_waitcnt lgkmcnt(0)")
            return
        if i == 0:
            a("s_memrealtime s[98:99]")
        a(f"s_memtime s[{86+2*i}:{87+2*i}]\ns_waitcnt lgkmcnt(0)")
def stamp_dump(a, n, wave_sreg, koff, ws_lo, ws_hi):
    if not DIAG: return
    stamp(a, 6)
    a("v_mov_b32 v5, s86\nv_mov_b32 v6, s98\nv_mov_b32 v7, s100")
    a(f"""
    s_mov_b32 s84, s{ws_lo}
    s_mov_b32 s85, s{ws_hi}
    s_mov_b32 s86, 0x10000000
    s_mov_b32 s87, 0x00020000
    s_lshl_b32 s58, s2, 3
    s_add_u32 s58, s58, s{wave_sreg}
    s_lshl_b32 s58, s58, 6
    s_add_u32 s58, s58, {DIAG_OFF + koff}
    v_mov_b32 v3, 0
    s_mov_b64 exec, 1
""")
    a("buffer_store_dword v5, v3, s[84:87], s58 offen")
    a("buffer_store_dword v6, v3, s[84:87], s58 offen offset:32")
    a("buffer_store_dword v7, v3, s[84:87], s58 offen offset:36")
    for i in range(1, n):
        a(f"v_mov_b32 v4, s{86+2*i}\nbuffer_store_dword v4, v3, s[84:87], s58 offen offset:{4*i}")
    a("s_waitcnt vmcnt(0)")

def code_touch(a, endlabel, wave_sreg, st, dst):
    lab = a.new("pc")
    a(f"""
    s_getpc_b64 s[{st}:{st+1}]
{lab}:
    s_lshl_b32 s{st+2}, s{wave_sreg}, 13
    v_lshlrev_b32 v20, 7, v1
    v_add_u32 v20, s{st+2}, v20
    v_mov_b32 v23, s{st+1}
    v_add_co_u32 v22, vcc, s{st}, v20
    s_nop 1
    v_addc_co_u32 v23, vcc, 0, v23, vcc
    v_cmp_gt_u32 vcc, {endlabel}-{lab}, v20
    s_and_saveexec_b64 s[{st+2}:{st+3}], vcc
    s_cbranch_execz {lab}_skip
    global_load_dword v{dst}, v[22:23], off
{lab}_skip:
    s_mov_b64 exec, s[{st+2}:{st+3}]
""")

HT = os.environ.get("HT", "0") == "1"
TS_OFF = WS_USED - 64

def ht_store(a, idx, srd, cond_sreg_pairs, st):
    if not HT: return
    lab = a.new("ht")
    for (sr_, val) in cond_sreg_pairs:
        a(f"s_cmp_lg_u32 s{sr_}, {val}\ns_cbranch_scc1 {lab}")
    a(f"""
    s_memrealtime s[{st}:{st+1}]
    s_waitcnt lgkmcnt(0)
    v_mov_b32 v30, s{st}
    v_mov_b32 v31, {TS_BASE + 4*idx}
    s_mov_b64 exec, 1
    buffer_store_dword v30, v31, s[{srd}:{srd+3}], 0 offen sc1
    s_mov_b64 exec, -1
{lab}:
""")
```

```python
from gen_common import *
import os

STAGE = 36864
NST = 4
K1_LDS = STAGE * NST
GATE_R, UP_R, QKV_R = 16384, 23552, 30720
ACC = 96
def acc(tm, jj): return ACC + (jj * 4 + tm) * 4
AF = [32, 48]
BR = 64
S_X = 4; S_WS = 8
P_GATE, P_UP, P_QKV, P_GW, P_DBG, P_WS, P_WO, P_WD, P_X = 12, 14, 16, 18, 20, 22, 24, 26, 28
SI, SJ, SW, SWM, SWN, S224, S64 = 30, 31, 32, 33, 34, 35, 36
SWST, SRST, SCNT = 37, 38, 39
SLOT_SRD = 40
SLOT_OFF = 64; SLOT_STR = 70; SLOT_LDS = 76
T0, T1, T2, T3 = 82, 83, 84, 85
S_DBG = 40; S_GW = 44; E_HB = 48; E_RB = 49; E_ROW = 50; E_CNT = 52; E_EX = 54; E_T = 56; E_M = 58
VSLOT = 6
STF = os.environ.get("K1_STF", "")

def gen_k1(a: Asm, name="k1_kernel"):
    a(f""".globl {name}
.p2align 8
.type {name},@function""")
    a.label(name)
    a(f"""
    s_cmp_ge_u32 s2, 256
    s_cbranch_scc1 {name}_done
    s_load_dwordx2 s[{P_X}:{P_X+1}], s[0:1], 0
    s_load_dwordx2 s[{P_QKV}:{P_QKV+1}], s[0:1], 8
    s_load_dwordx2 s[{P_WO}:{P_WO+1}], s[0:1], 16
    s_load_dwordx4 s[{P_GATE}:{P_GATE+3}], s[0:1], 32
    s_load_dwordx2 s[{P_WD}:{P_WD+1}], s[0:1], 48
    s_load_dwordx2 s[{P_GW}:{P_GW+1}], s[0:1], 56
    s_load_dwordx4 s[{P_DBG}:{P_DBG+3}], s[0:1], 72
    v_and_b32 v1, 63, v0
    v_lshrrev_b32 v2, 6, v0
    s_nop 0
    v_readfirstlane_b32 s{SW}, v2
    s_and_b32 s{SJ}, s2, 7
    s_lshl_b32 s{SJ}, s{SJ}, 2
    s_lshr_b32 s{T0}, s2, 6
    s_add_u32 s{SJ}, s{SJ}, s{T0}
    s_lshr_b32 s{SI}, s2, 3
    s_and_b32 s{SI}, s{SI}, 7                ; i
    s_and_b32 s{SWM}, s{SW}, 3
    s_lshr_b32 s{SWN}, s{SW}, 2
    s_mul_i32 s{S224}, s{SJ}, 224
    s_lshl_b32 s{S64}, s{SJ}, 6
    v_lshrrev_b32 v2, 4, v1                 ; g = l>>4
    v_and_b32 v3, 3, v1                     ; q = l&3
    v_lshrrev_b32 v4, 2, v1
    v_and_b32 v4, 3, v4                     ; r = (l>>2)&3
    v_and_b32 v5, 15, v1                    ; l&15
    v_lshrrev_b32 v21, 1, v2
    v_and_b32 v22, 1, v2
    v_xor_b32 v22, v22, v21
    v_lshlrev_b32 v22, 1, v22
    v_or_b32 v22, v22, v21                  ; f(g)
    v_xor_b32 v22, v22, v3                  ; c = p ^ f(Q)
    v_lshlrev_b32 v22, 4, v22
    v_lshrrev_b32 v21, 2, v1
    v_lshlrev_b32 v21, 11, v21
    v_add_u32 v25, v21, v22
    s_waitcnt lgkmcnt(0)
    s_mov_b32 s{S_X}, s{P_X}
    s_mov_b32 s{S_X+1}, s{P_X+1}
    s_mov_b32 s{S_X+2}, 4194304
    s_mov_b32 s{S_X+3}, 0x00020000
    s_mov_b32 s{S_WS}, s{P_WS}
    s_mov_b32 s{S_WS+1}, s{P_WS+1}
    s_mov_b32 s{S_WS+2}, {WS_USED}
    s_mov_b32 s{S_WS+3}, 0x00020000
    s_mov_b32 s{SWST}, 0
    s_mov_b32 s{SRST}, 0
    """)
    stamp(a, 0)
    ht_store(a, 0, S_WS, [(2, 0), (SW, 0)], 86)
    a(f"""
    s_mul_i32 s{T2}, s{SW}, 3
    s_lshl_b32 s{T3}, s{SW}, 1
    s_add_u32 s{T3}, s{T3}, 4
    s_cmp_lt_u32 s{SW}, 4
    s_cselect_b32 s{T2}, s{T2}, s{T3}
    s_add_u32 s{T2}, s{T2}, 14
""")
    for s_ in range(5):
        srd = SLOT_SRD + 4 * s_
        vo = VSLOT + s_
        lq = a.new("slotq"); le = a.new("slote")
        if s_ < 2:
            a(f"""
    s_lshl_b32 s{T3}, s{SW}, 1
    s_add_u32 s{T3}, s{T3}, {s_}
    s_lshl_b32 s{SLOT_LDS+s_}, s{T3}, 10
    s_mov_b32 s{SLOT_OFF+s_}, 0
    s_mov_b32 s{srd}, s{P_X}
    s_mov_b32 s{srd+1}, s{P_X+1}
    s_mov_b32 s{srd+2}, 4194304
    s_mov_b32 s{srd+3}, 0x00020000
    s_mov_b32 s{SLOT_STR+s_}, 64
    s_lshl_b32 s{T0}, s{SI}, 19
    s_lshl_b32 s{T1}, s{T3}, 15
    s_add_u32 s{T0}, s{T0}, s{T1}
    v_add_u32 v{vo}, s{T0}, v25
""")
            continue
        a(f"""
    s_add_u32 s{T3}, s{T2}, {s_}            ; n
    s_lshl_b32 s{SLOT_LDS+s_}, s{T3}, 10
    s_mov_b32 s{SLOT_OFF+s_}, 0
    s_mov_b32 s{srd+3}, 0x00020000
    s_cmp_lt_u32 s{T3}, 30
    s_cbranch_scc0 {lq}
    s_cmp_lt_u32 s{T3}, 23
    s_cselect_b32 s{srd}, s{P_GATE}, s{P_UP}
    s_cselect_b32 s{srd+1}, s{P_GATE+1}, s{P_UP+1}
    s_cselect_b32 s{T0}, 16, 23
    s_sub_u32 s{T3}, s{T3}, s{T0}
    s_mov_b32 s{srd+2}, 7340032
    s_mov_b32 s{SLOT_STR+s_}, 229376
    s_lshl_b32 s{T3}, s{T3}, 6
    v_add_u32 v20, s{T3}, v1                ; slot
    v_mul_u32_u24 v21, 4682, v20
    v_lshrrev_b32 v21, 16, v21              ; rho
    v_mul_u32_u24 v22, 14, v21
    v_sub_u32 v22, v20, v22                 ; c
    v_and_b32 v23, 0x13, v21
    v_and_b32 v24, 4, v21
    v_lshlrev_b32 v24, 1, v24
    v_or_b32 v23, v23, v24
    v_and_b32 v24, 8, v21
    v_lshrrev_b32 v24, 1, v24
    v_or_b32 v23, v23, v24                  ; k
    v_mul_u32_u24 v23, 7168, v23
    v_lshlrev_b32 v22, 4, v22
    v_add_u32 v23, v23, v22
    v_add_u32 v{vo}, s{S224}, v23
    s_branch {le}
{lq}:
    s_mov_b32 s{srd}, s{P_QKV}
    s_mov_b32 s{srd+1}, s{P_QKV+1}
    s_mov_b32 s{srd+2}, 6291456
    s_mov_b32 s{SLOT_STR+s_}, 196608
    s_sub_u32 s{T3}, s{T3}, 30
    s_lshl_b32 s{T3}, s{T3}, 6
    v_add_u32 v20, s{T3}, v1                ; slot
    v_mul_u32_u24 v21, 5462, v20
    v_lshrrev_b32 v21, 16, v21              ; k
    v_mul_u32_u24 v22, 12, v21
    v_sub_u32 v22, v20, v22                 ; c'
    v_lshrrev_b32 v23, 3, v21
    v_and_b32 v23, 1, v23
    v_lshlrev_b32 v23, 1, v23
    v_xor_b32 v22, v22, v23                 ; c
    v_lshrrev_b32 v23, 2, v22               ; part
    v_lshlrev_b32 v23, 11, v23
    v_and_b32 v22, 3, v22
    v_lshlrev_b32 v22, 4, v22
    v_mul_u32_u24 v21, 6144, v21
    v_add_u32 v21, v21, v23
    v_add_u32 v21, v21, v22
    v_add_u32 v{vo}, s{S64}, v21
{le}:
""")
    def dma_one(s, wn):
        srd = SLOT_SRD + 4 * s
        L = [f"s_add_u32 m0, s{SWST}, s{SLOT_LDS+s}", f"s_nop 0",
             f"buffer_load_dwordx4 v{VSLOT+s}, s[{srd}:{srd+3}], s{SLOT_OFF+s} offen lds",
             f"s_add_u32 s{SLOT_OFF+s}, s{SLOT_OFF+s}, s{SLOT_STR+s}"]
        if s == 4:
            if wn == 1:
                return []
            if wn is None:
                lab = a.new("skip")
                L = [f"s_cmp_ge_u32 s{SW}, 4", f"s_cbranch_scc1 {lab}"] + L + [f"{lab}:"]
        return L
    def wst_advance():
        return [f"s_add_u32 s{SWST}, s{SWST}, {STAGE}", f"s_cmp_eq_u32 s{SWST}, {STAGE*NST}", f"s_cselect_b32 s{SWST}, 0, s{SWST}"]
    for st in range(3):
        for s_ in range(5):
            a("\n".join(dma_one(s_, None)))
        a(f"s_add_u32 s{SWST}, s{SWST}, {STAGE}")
    a(f"""
    v_lshrrev_b32 v21, 1, v4
    v_and_b32 v22, 1, v4
    v_xor_b32 v22, v22, v21
    v_lshlrev_b32 v22, 1, v22
    v_or_b32 v22, v22, v21                  ; f(r)
    v_xor_b32 v22, v22, v2
    v_lshlrev_b32 v22, 4, v22
    s_lshl_b32 s{T0}, s{SWM}, 12
    v_lshlrev_b32 v13, 6, v5
    v_add_u32 v13, v13, v22
    v_add_u32 v13, s{T0}, v13
    v_lshrrev_b32 v21, 1, v2                ; g1
    v_and_b32 v22, 1, v2                    ; g0
    v_lshlrev_b32 v15, 4, v21
    v_lshlrev_b32 v16, 2, v22
    v_add_u32 v15, v15, v16
    v_add_u32 v15, v15, v4
    v_mul_u32_u24 v15, 224, v15
    v_lshrrev_b32 v16, 1, v3
    v_lshlrev_b32 v16, 4, v16
    v_and_b32 v17, 1, v3
    v_lshlrev_b32 v17, 3, v17
    v_add_u32 v16, v16, v17
    v_add_u32 v15, v15, v16
    v_lshlrev_b32 v17, 3, v2
    v_add_u32 v17, v17, v4
    v_mul_u32_u24 v17, 192, v17
    v_add_u32 v17, v17, v16
    v_lshlrev_b32 v18, 5, v22
    v_sub_u32 v19, v17, v18                 ; odd
    v_add_u32 v17, v17, v18                 ; even
""")
    LA = int(os.environ.get("K1_LA", "6"))
    if LA:
        a(f"""
    s_lshl_b32 s{T0}, s2, 3
    s_add_u32 s{T0}, s{T0}, s{SW}           ; gw
    v_lshlrev_b32 v20, 11, v1
    v_add_u32 v20, s{T0}, v20
    v_subrev_u32 v21, 5120, v20
    v_min_u32 v21, 2047, v21
    v_lshlrev_b32 v21, 11, v21              ; off
    v_add_u32 v21, {LA*64}, v21
    v_mov_b32 v84, 64
    v_mov_b32 v82, s{P_X}
    v_mov_b32 v83, s{P_X+1}
    v_subrev_u32 v22, 3584, v20
    v_lshlrev_b32 v22, 7, v22
    v_add_u32 v22, {LA*196608}, v22
    v_cmp_gt_u32 vcc, 5120, v20
    v_mov_b32 v23, 196608
    v_mov_b32 v24, s{P_QKV}
    v_mov_b32 v25, s{P_QKV+1}
    v_cndmask_b32 v21, v21, v22, vcc
    v_cndmask_b32 v84, v84, v23, vcc
    v_cndmask_b32 v82, v82, v24, vcc
    v_cndmask_b32 v83, v83, v25, vcc
    v_subrev_u32 v22, 1792, v20
    v_lshlrev_b32 v22, 7, v22
    v_add_u32 v22, {LA*229376}, v22
    v_cmp_gt_u32 vcc, 3584, v20
    v_mov_b32 v23, 229376
    v_mov_b32 v24, s{P_UP}
    v_mov_b32 v25, s{P_UP+1}
    v_cndmask_b32 v21, v21, v22, vcc
    v_cndmask_b32 v84, v84, v23, vcc
    v_cndmask_b32 v82, v82, v24, vcc
    v_cndmask_b32 v83, v83, v25, vcc
    v_lshlrev_b32 v22, 7, v20
    v_add_u32 v22, {LA*229376}, v22
    v_cmp_gt_u32 vcc, 1792, v20
    v_mov_b32 v24, s{P_GATE}
    v_mov_b32 v25, s{P_GATE+1}
    s_nop 0
    v_cndmask_b32 v21, v21, v22, vcc
    v_cndmask_b32 v82, v82, v24, vcc
    v_cndmask_b32 v83, v83, v25, vcc
    v_add_co_u32 v82, vcc, v82, v21
    s_nop 1
    v_addc_co_u32 v83, vcc, 0, v83, vcc
    s_mov_b64 exec, 15
    global_load_dword v85, v[82:83], off
    global_load_dword v85, v[82:83], off
    s_mov_b64 exec, -1
""")
    for r in range(ACC, 256):
        a(f"v_mov_b32 v{r}, 0")
    a(f"""
    s_waitcnt vmcnt({8 + 2 * (LA > 0)})
    s_barrier
    s_cmp_eq_u32 s{SWN}, 0
    s_cbranch_scc0 {name}_wn1
""")

    def gate_loads(rr):
        b = 56 + 16 * rr
        a(f"""
    s_lshl_b32 s{T0}, s{SI}, 8
    s_lshl_b32 s{T1}, s{SJ}, 3
    s_add_u32 s{T0}, s{T0}, s{T1}
    s_lshl_b32 s{T1}, s{SWM}, 1
    s_add_u32 s{T0}, s{T0}, s{T1}
    s_add_u32 s{E_ROW+rr}, s{T0}, {rr}
    s_lshl_b32 s{T0}, s{E_ROW+rr}, 11
    v_lshlrev_b32 v20, 5, v1
    buffer_load_dwordx4 v[{b}:{b+3}], v20, s[{S_X}:{S_X+3}], s{T0} offen
    buffer_load_dwordx4 v[{b+4}:{b+7}], v20, s[{S_X}:{S_X+3}], s{T0} offen offset:16
""")
        if rr == 0:
            a(f"""
    buffer_load_dwordx4 v[88:91], v20, s[{S_GW}:{S_GW+3}], 0 offen
    buffer_load_dwordx4 v[92:95], v20, s[{S_GW}:{S_GW+3}], 0 offen offset:16
""")
    def gate_compute(rr):
        b = 56 + 16 * rr
        a("v_mov_b32 v24, 0")
        for d in range(8):
            a(f"""
    v_lshlrev_b32 v25, 16, v{b+d}
    v_and_b32 v26, 0xffff0000, v{b+d}
    v_lshlrev_b32 v27, 16, v{88+d}
    v_and_b32 v28, 0xffff0000, v{88+d}
    v_mul_f32 v25, v25, v27
    v_mul_f32 v26, v26, v28
    v_cvt_pk_bf16_f32 v25, v25, v26
    v_lshlrev_b32 v26, 16, v25
    v_and_b32 v25, 0xffff0000, v25
    v_add_f32 v24, v24, v26
    v_add_f32 v24, v24, v25
""")
        for off in (0x041F, 0x081F, 0x101F, 0x201F, 0x401F):
            a(f"""
    ds_swizzle_b32 v25, v24 offset:{off}
    s_waitcnt lgkmcnt(0)
    v_add_f32 v24, v24, v25
""")
        a(f"""
    s_nop 0
    v_readlane_b32 s{T0}, v24, 32
    s_nop 1
    v_add_f32 v24, s{T0}, v24
    v_cvt_pk_bf16_f32 v24, v24, v24
    v_lshlrev_b32 v24, 16, v24
    v_mul_f32 v24, 0xbfb8aa3b, v24
    v_exp_f32 v24, v24
    s_nop 0
    v_add_f32 v24, 1.0, v24
    v_rcp_f32 v24, v24
    s_nop 0
    v_cvt_pk_bf16_f32 v24, v24, v24
    v_lshlrev_b32 v24, 16, v24
    s_lshl_b32 s{T0}, s{E_ROW+rr}, 2
    s_add_u32 s{T0}, s{T0}, {G_OFF}
    v_mov_b32 v25, 0
    s_mov_b64 s[{E_EX}:{E_EX+1}], exec
    s_mov_b64 exec, 1
    buffer_store_dword v24, v25, s[{S_WS}:{S_WS+3}], s{T0} offen
    s_mov_b64 exec, s[{E_EX}:{E_EX+1}]
""")

    def frag_desc(wn):
        d = []
        if wn == 0:
            for t in range(5): d.append((16, GATE_R + 32 * t, 1792, 'T'))
            for t in range(5): d.append((16, UP_R + 32 * t, 1792, 'T'))
        else:
            for t in (5, 6): d.append((16, GATE_R + 32 * t, 1792, 'T'))
            for t in (5, 6): d.append((16, UP_R + 32 * t, 1792, 'T'))
            for t in range(6):
                d.append((18 if t % 2 == 0 else 20, QKV_R + 32 * t, 768, 'T' if t < 2 else 'N'))
        return d
    def set_addrs(wn):
        L = [f"v_add_u32 v14, s{SRST}, v13", f"v_add_u32 v16, s{SRST}, v15"]
        if wn == 1:
            L += [f"v_add_u32 v18, s{SRST}, v17", f"v_add_u32 v20, s{SRST}, v19"]
        L += [f"s_add_u32 s{SRST}, s{SRST}, {STAGE}", f"s_cmp_eq_u32 s{SRST}, {STAGE*NST}", f"s_cselect_b32 s{SRST}, 0, s{SRST}"]
        return L
    def rd_b(desc, jj, slot):
        ar, off, sec, _ = desc[jj]
        b = BR + 4 * slot
        if os.environ.get("K1_NOLDSB", "0") == "1" and jj >= 2:
            return ["s_nop 0", "s_nop 0"]
        return [f"ds_read_b64_tr_b16 v[{b}:{b+1}], v{ar} offset:{off}",
                f"ds_read_b64_tr_b16 v[{b+2}:{b+3}], v{ar} offset:{off+sec}"]
    def rd_a(par):
        return [f"ds_read_b128 v[{AF[par]+4*tm}:{AF[par]+4*tm+3}], v14 offset:{1024*tm}" for tm in range(4)]

    def step(wn, par, dma, vm, barrier, pre, pf=False, touch=False):
        desc = frag_desc(wn)
        if vm is not None:
            a(f"s_waitcnt vmcnt({vm})")
        if barrier:
            a("s_barrier")
        for jj in range(10):
            slot = (jj + 2 * par) % 4
            V1 = os.environ.get("K1_V1", "0") == "1"
            fill = []
            if not V1:
                if jj + 2 < 10:
                    a("\n".join(rd_b(desc, jj + 2, (jj + 2 + 2 * par) % 4)))
                    a("s_waitcnt lgkmcnt(4)")
                elif pre:
                    npar = 1 - par
                    if jj == 8:
                        a("\n".join(set_addrs(wn)))
                        a("\n".join(rd_a(npar)))
                        a("\n".join(rd_b(desc, 0, (0 + 2 * npar) % 4)))
                    else:
                        a("\n".join(rd_b(desc, 1, (1 + 2 * npar) % 4)))
                    a("s_waitcnt lgkmcnt(8)")
                else:
                    a(f"s_waitcnt lgkmcnt({2 if jj == 8 else 0})")
            else:
                npar = 1 - par
                if jj < 9:
                    a("s_waitcnt lgkmcnt(2)")
                else:
                    a(f"s_waitcnt lgkmcnt({6 if pre else 0})")
                if jj + 2 < 10:
                    r_ = rd_b(desc, jj + 2, (jj + 2 + 2 * par) % 4)
                    fill = [[r_[0]], [r_[1]]]
                elif pre and jj == 8:
                    ra = rd_a(npar); rb = rd_b(desc, 0, (0 + 2 * npar) % 4)
                    fill = [set_addrs(wn) + [ra[0]], [ra[1], ra[2]], [ra[3], rb[0]], [rb[1]]]
                elif pre:
                    r_ = rd_b(desc, 1, (1 + 2 * npar) % 4)
                    fill = [[r_[0]], [r_[1]]]
            b = BR + 4 * slot
            for tm in range(4):
                c = acc(tm, jj); x = AF[par] + 4 * tm
                if desc[jj][3] == 'T':
                    a(f"v_mfma_f32_16x16x32_bf16 v[{c}:{c+3}], v[{b}:{b+3}], v[{x}:{x+3}], v[{c}:{c+3}]")
                else:
                    a(f"v_mfma_f32_16x16x32_bf16 v[{c}:{c+3}], v[{x}:{x+3}], v[{b}:{b+3}], v[{c}:{c+3}]")
                if tm < len(fill):
                    a("\n".join(fill[tm]))
            if pf and jj == 0:
                a(f"""
    s_lshl_b32 s{T0}, s2, 3
    s_add_u32 s{T0}, s{T0}, s{SW}
    s_lshl_b32 s{T0}, s{T0}, 10
    v_lshlrev_b32 v80, 4, v1
    v_add_u32 v80, s{T0}, v80
    s_mov_b32 s{SLOT_SRD}, s{P_WD}
    s_mov_b32 s{SLOT_SRD+1}, s{P_WD+1}
    s_mov_b32 s{SLOT_SRD+2}, 7340032
    s_mov_b32 s{SLOT_SRD+4}, s{P_WO}
    s_mov_b32 s{SLOT_SRD+5}, s{P_WO+1}
    s_mov_b32 s{SLOT_SRD+6}, 2097152
    s_mov_b32 s{T0}, 0
""")
            if pf and jj < 4:
                a(f"buffer_load_dwordx4 v[84:87], v80, s[{SLOT_SRD}:{SLOT_SRD+3}], s{T0} offen\ns_add_u32 s{T0}, s{T0}, 0x200000")
            if pf and jj == 4:
                a(f"buffer_load_dwordx4 v[84:87], v80, s[{SLOT_SRD+4}:{SLOT_SRD+7}], 0 offen")
            if dma and jj < 5:
                a("\n".join(dma_one(jj, wn)))
                if jj == 4:
                    a("\n".join(wst_advance()))
                    if touch:
                        lab = a.new("nt")
                        thr = -(-(LA - 2) // 2) if par == 0 else -(-(LA - 1) // 2)
                        a(f"""
    s_mov_b64 exec, 15
    global_load_dword v85, v[82:83], off
    s_cmp_lt_u32 s{SCNT}, {thr}
    s_cbranch_scc1 {lab}
    v_add_co_u32 v82, vcc, v82, v84
    s_nop 1
    v_addc_co_u32 v83, vcc, 0, v83, vcc
{lab}:
    s_mov_b64 exec, -1
""")

    def glu_calc(G, U, tb, d):
        a(f"""
    v_cvt_pk_bf16_f32 v{tb}, v{G}, v{G+1}
    v_cvt_pk_bf16_f32 v{tb+1}, v{G+2}, v{G+3}
    v_cvt_pk_bf16_f32 v{tb+2}, v{U}, v{U+1}
    v_cvt_pk_bf16_f32 v{tb+3}, v{U+2}, v{U+3}
    v_lshlrev_b32 v{tb+4}, 16, v{tb}
    v_lshlrev_b32 v{tb+5}, 16, v{tb+2}
    v_and_b32 v{tb}, 0xffff0000, v{tb}
    v_and_b32 v{tb+2}, 0xffff0000, v{tb+2}
    v_mul_f32 v{tb+4}, v{tb+4}, v{tb+5}
    v_mul_f32 v{tb}, v{tb}, v{tb+2}
    v_lshlrev_b32 v{tb+5}, 16, v{tb+1}
    v_lshlrev_b32 v{tb+2}, 16, v{tb+3}
    v_and_b32 v{tb+1}, 0xffff0000, v{tb+1}
    v_and_b32 v{tb+3}, 0xffff0000, v{tb+3}
    v_mul_f32 v{tb+5}, v{tb+5}, v{tb+2}
    v_mul_f32 v{tb+1}, v{tb+1}, v{tb+3}
    v_cvt_pk_bf16_f32 v{d}, v{tb+4}, v{tb}
    v_cvt_pk_bf16_f32 v{d+1}, v{tb+5}, v{tb+1}
""")
    rot = [0]
    def glu_store(groups, tms):
        for tm in tms:
            a(f"s_add_u32 s{E_T}, s{E_HB}, {tm * 16 * AH_LD}")
            for grp in groups:
                d = 32 + 4 * (rot[0] % 4); rot[0] += 1
                for x, (jg, ju, t) in enumerate(grp):
                    glu_calc(acc(tm, jg), acc(tm, ju), 24, d + 2 * x)
                t = grp[0][2]
                if len(grp) == 2:
                    a(f"""
    s_nop 1
    v_permlane16_swap_b32 v{d}, v{d+2}
    v_permlane16_swap_b32 v{d+1}, v{d+3}
    buffer_store_dwordx4 v[{d}:{d+3}], v19, s[{S_WS}:{S_WS+3}], s{E_T} offen offset:{32*t} {STF}
""")
                else:
                    a(f"buffer_store_dwordx2 v[{d}:{d+1}], v21, s[{S_WS}:{S_WS+3}], s{E_T} offen offset:{32*t} {STF}")

    def phi4(src, dst, t0):
        L = []
        for h in range(2):
            s0, s1 = src + 2 * h, src + 2 * h + 1
            L += [f"v_cvt_pk_bf16_f32 v{t0}, v{s0}, v{s1}",
                  f"v_lshlrev_b32 v{t0+1}, 16, v{t0}",
                  f"v_and_b32 v{t0}, 0xffff0000, v{t0}",
                  f"v_mul_f32 v{t0+2}, 0x3fb8aa3b, v{t0+1}",
                  f"v_mul_f32 v{t0+3}, 0x3fb8aa3b, v{t0}",
                  f"v_min_f32 v{t0+2}, 0, v{t0+2}",
                  f"v_min_f32 v{t0+3}, 0, v{t0+3}",
                  f"v_exp_f32 v{t0+2}, v{t0+2}",
                  f"v_exp_f32 v{t0+3}, v{t0+3}",
                  f"v_max_f32 v{t0+1}, 0, v{t0+1}",
                  f"v_max_f32 v{t0}, 0, v{t0}",
                  f"v_add_f32 v{t0+2}, v{t0+2}, v{t0+1}",
                  f"v_add_f32 v{t0+3}, v{t0+3}, v{t0}",
                  f"v_cvt_pk_bf16_f32 v{t0}, v{t0+2}, v{t0+3}",
                  f"v_lshlrev_b32 v{t0+1}, 16, v{t0}",
                  f"v_and_b32 v{t0}, 0xffff0000, v{t0}",
                  f"v_add_f32 v{t0+1}, 0x358637bd, v{t0+1}",
                  f"v_add_f32 v{t0}, 0x358637bd, v{t0}",
                  f"v_cvt_pk_bf16_f32 v{dst+h}, v{t0+1}, v{t0}"]
        return L

    for wn in (0, 1):
        if wn == 1:
            a.label(f"{name}_wn1")
        desc = frag_desc(wn)
        a("\n".join(set_addrs(wn)))
        a("\n".join(rd_a(0)))
        a("\n".join(rd_b(desc, 0, 0)))
        a("\n".join(rd_b(desc, 1, 1)))
        stamp(a, 1)
        if wn == 0: ht_store(a, 1, S_WS, [(2, 0), (SW, 0)], 86)
        a(f"s_mov_b32 s{SCNT}, 14")
        lp = f"{name}_loop{wn}"
        a.label(lp)
        VM = 5 if wn == 0 else 4
        step(wn, 0, True, VM + 2 * (LA > 0), True, True, touch=LA > 0)
        step(wn, 1, True, VM + 2 * (LA > 0), True, True, touch=LA > 0)
        a(f"""
    s_sub_u32 s{SCNT}, s{SCNT}, 1
    s_cmp_lg_u32 s{SCNT}, 0
    s_cbranch_scc1 {lp}
""")
        step(wn, 0, True, VM + 2 * (LA > 0), True, True)
        step(wn, 1, False, VM + 1 * (LA > 0), True, True, pf=True)
        step(wn, 0, False, 5, True, True)
        step(wn, 1, False, None, False, False)
        stamp(a, 2)
        if wn == 0: ht_store(a, 2, S_WS, [(2, 0), (SW, 0)], 86)
        if wn == 1 and os.environ.get("K1_NOPRIO", "0") != "1":
            a("s_setprio 3")
        a(f"""
    s_nop 7
    s_nop 7
    s_barrier
    s_mov_b32 s{S_DBG}, s{P_DBG}
    s_mov_b32 s{S_DBG+1}, s{P_DBG+1}
    s_mov_b32 s{S_DBG+2}, 256
    s_mov_b32 s{S_DBG+3}, 0x00020000
    s_mov_b32 s{S_GW}, s{P_GW}
    s_mov_b32 s{S_GW+1}, s{P_GW+1}
    s_mov_b32 s{S_GW+2}, 2048
    s_mov_b32 s{S_GW+3}, 0x00020000
    s_lshl_b32 s{T0}, s{SI}, 8
    s_lshl_b32 s{T1}, s{SWM}, 6
    s_add_u32 s{T0}, s{T0}, s{T1}
    s_mul_i32 s{E_RB}, s{T0}, {AH_LD}       ; (256i+64wm)*ld
    s_add_u32 s{E_HB}, s{E_RB}, s{S224}
    s_add_u32 s{E_HB}, s{E_HB}, 2048        ; h base
    v_mul_u32_u24 v21, {AH_LD}, v5
    v_lshlrev_b32 v22, 3, v2
    v_add_u32 v21, v21, v22                 ; (l&15)*ld + 8g
    v_mul_u32_u24 v19, {AH_LD}, v5
    v_and_b32 v22, 1, v2
    v_lshlrev_b32 v22, 5, v22
    v_add_u32 v19, v19, v22
    v_lshrrev_b32 v22, 1, v2
    v_lshlrev_b32 v22, 4, v22
    v_add_u32 v19, v19, v22                 ; (l&15)*ld + 32(g&1) + 16(g>>1)
""")
        if wn == 0:
            G0 = [[(0, 5, 0), (1, 6, 1)], [(2, 7, 2), (3, 8, 3)], [(4, 9, 4)]]
            gate_loads(0); gate_loads(1)
            glu_store(G0, [0])
            a("s_barrier")
            glu_store(G0, [1])
            a("s_barrier")
            glu_store(G0, [2, 3])
            a("s_waitcnt vmcnt(12)")
            gate_compute(0); gate_compute(1)
            stamp(a, 3)
            a("s_barrier")
            stamp(a, 4)
            a("s_waitcnt vmcnt(0)")
            stamp(a, 5)
            stamp_dump(a, 6, SW, 0, P_WS, P_WS + 1)
            a(f"s_branch {name}_done")
        else:
            a("v_mov_b32 v48, 0x3f803f80\nv_mov_b32 v49, 0x3f803f80\nv_mov_b32 v50, 0x3f803f80\nv_mov_b32 v51, 0x3f803f80")
            for pp in range(2):
                for dt in range(2):
                    for hh in range(2):
                        a("\n".join(phi4(acc(2 * pp + hh, 6 + dt), 32 + 4 * dt + 2 * hh, 80)))
                for et in range(2):
                    for hh in range(2):
                        s = acc(2 * pp + hh, 8 + et); d = 40 + 4 * et + 2 * hh
                        a(f"v_cvt_pk_bf16_f32 v{d}, v{s}, v{s+1}\nv_cvt_pk_bf16_f32 v{d+1}, v{s+2}, v{s+3}")
                a("s_nop 1")
                for dt in range(2):
                    for et in range(2):
                        c = 56 + 4 * (dt * 2 + et)
                        cc = f"v[{c}:{c+3}]" if pp else "0"
                        a(f"v_mfma_f32_16x16x32_bf16 v[{c}:{c+3}], v[{32+4*dt}:{35+4*dt}], v[{40+4*et}:{43+4*et}], {cc}")
                    c = 72 + 4 * dt
                    cc = f"v[{c}:{c+3}]" if pp else "0"
                    a(f"v_mfma_f32_16x16x32_bf16 v[{c}:{c+3}], v[{32+4*dt}:{35+4*dt}], v[48:51], {cc}")
            a(f"""
    s_nop 7
    s_mul_i32 s{T0}, s{SWM}, 6144
    v_lshlrev_b32 v22, 3, v1                ; lane*8
    v_add_u32 v23, s{T0}, v22
""")
            for p in range(12):
                a(f"ds_write_b64 v23, v[{56+2*p}:{57+2*p}] offset:{512*p}")
            a(f"""
    s_waitcnt lgkmcnt(0)
    s_barrier                                ; B2
    s_mul_i32 s{T0}, s{SWM}, 1536
    v_add_u32 v23, s{T0}, v22
""")
            for p in range(3):
                for w in range(4):
                    a(f"ds_read_b64 v[{32+8*p+2*w}:{33+8*p+2*w}], v23 offset:{w*6144+512*p}")
            a(f"""
    s_lshl_b32 s{T0}, s{SJ}, 3
    s_add_u32 s{T0}, s{T0}, s{SI}
    s_mul_i32 s{T0}, s{T0}, 6144
    s_add_u32 s{T0}, s{T0}, {KVP_OFF}
    s_waitcnt lgkmcnt(0)
""")
            for p in range(3):
                b = 32 + 8 * p
                a(f"""
    v_add_f32 v{b}, v{b}, v{b+2}
    v_add_f32 v{b+1}, v{b+1}, v{b+3}
    v_add_f32 v{b+4}, v{b+4}, v{b+6}
    v_add_f32 v{b+5}, v{b+5}, v{b+7}
    v_add_f32 v{b}, v{b}, v{b+4}
    v_add_f32 v{b+1}, v{b+1}, v{b+5}
    buffer_store_dwordx2 v[{b}:{b+1}], v23, s[{S_WS}:{S_WS+3}], s{T0} offen offset:{512*p} sc1
""")
            lsk = a.new("nosig")
            a(f"""
    s_waitcnt vmcnt(0)
    s_barrier                                ; B3
    s_lshl_b32 s{E_CNT}, s{SJ}, 2
    v_mov_b32 v24, 1
    v_mov_b32 v25, 0
    s_cmp_lg_u32 s{SWM}, 0
    s_cbranch_scc1 {lsk}
    s_mov_b64 s[{E_EX}:{E_EX+1}], exec
    s_mov_b64 exec, 1
    buffer_atomic_add v24, v25, s[{S_DBG}:{S_DBG+3}], s{E_CNT} offen sc1
    s_mov_b64 exec, s[{E_EX}:{E_EX+1}]
{lsk}:
""")
            stamp(a, 3)
            glu_store([[(0, 2, 5), (1, 3, 6)]], range(4))
            for tm in range(4):
                for dt in range(2):
                    a("\n".join(phi4(acc(tm, 4 + dt), 32 + 4 * tm + 2 * dt, 80)))
            lp2 = a.new("poll")
            a(f"""
    v_mov_b32 v25, 0
{lp2}:
    buffer_load_dword v24, v25, s[{S_DBG}:{S_DBG+3}], s{E_CNT} offen sc1
    s_waitcnt vmcnt(0)
    v_readfirstlane_b32 s{T0}, v24
    s_cmp_ge_u32 s{T0}, 8
    s_cbranch_scc1 {lp2}_ok
    s_sleep 2
    s_branch {lp2}
{lp2}_ok:
""")
            stamp(a, 4)
            a(f"""
    s_lshl_b32 s{T0}, s{SJ}, 3
    s_mul_i32 s{T0}, s{T0}, 6144
    s_add_u32 s{T0}, s{T0}, {KVP_OFF}
""")
            for ii in range(8):
                for p in range(3):
                    b = 96 + (p * 8 + ii) * 2
                    a(f"buffer_load_dwordx2 v[{b}:{b+1}], v23, s[{S_WS}:{S_WS+3}], s{T0} offen offset:{512*p} sc1")
                if ii < 7:
                    a(f"s_add_u32 s{T0}, s{T0}, 6144")
            a("s_waitcnt vmcnt(0)")
            for p in range(3):
                b = 96 + p * 16
                for st in (8, 4, 2):
                    for k in range(0, st, 2):
                        a(f"v_add_f32 v{b+k}, v{b+k}, v{b+k+st}\nv_add_f32 v{b+k+1}, v{b+k+1}, v{b+k+st+1}")
                a(f"ds_write_b64 v23, v[{b}:{b+1}] offset:{512*p}")
            a("""
    s_waitcnt lgkmcnt(0)
    s_barrier                                ; B4
""")
            for p in range(12):
                a(f"ds_read_b64 v[{56+2*p}:{57+2*p}], v22 offset:{512*p}")
            a("s_waitcnt lgkmcnt(0)")
            for et in range(2):
                for dt in range(2):
                    s = 56 + 4 * (dt * 2 + et); d = 96 + 4 * et + 2 * dt
                    a(f"v_cvt_pk_bf16_f32 v{d}, v{s}, v{s+1}\nv_cvt_pk_bf16_f32 v{d+1}, v{s+2}, v{s+3}")
            for dt in range(2):
                s = 72 + 4 * dt; d = 104 + 2 * dt
                a(f"v_cvt_pk_bf16_f32 v{d}, v{s}, v{s+1}\nv_cvt_pk_bf16_f32 v{d+1}, v{s+2}, v{s+3}")
            a(f"s_add_u32 s{E_HB}, s{E_RB}, s{S64}\ns_nop 0")
            for tm in range(4):
                for et in range(3):
                    c = 112 + 12 * tm + 4 * et
                    a(f"v_mfma_f32_16x16x32_bf16 v[{c}:{c+3}], v[{96+4*et}:{99+4*et}], v[{32+4*tm}:{35+4*tm}], 0")
            a("s_nop 7")
            for tm in range(4):
                a(f"s_add_u32 s{E_T}, s{E_HB}, {tm * 16 * AH_LD}")
                dn = 112 + 12 * tm + 8
                a(f"""
    v_cvt_pk_bf16_f32 v24, v{dn}, v{dn}
    v_lshlrev_b32 v24, 16, v24
    v_add_f32 v24, 0x358637bd, v24
    v_cvt_pk_bf16_f32 v24, v24, v24
    v_lshlrev_b32 v24, 16, v24
    v_rcp_f32 v24, v24
""")
                d = 72 + 4 * tm
                for et in range(2):
                    c = 112 + 12 * tm + 4 * et
                    tb = 56 + 8 * et
                    a(f"""
    v_cvt_pk_bf16_f32 v{tb}, v{c}, v{c+1}
    v_cvt_pk_bf16_f32 v{tb+1}, v{c+2}, v{c+3}
    v_lshlrev_b32 v{tb+2}, 16, v{tb}
    v_and_b32 v{tb+3}, 0xffff0000, v{tb}
    v_lshlrev_b32 v{tb+4}, 16, v{tb+1}
    v_and_b32 v{tb+5}, 0xffff0000, v{tb+1}
    v_mul_f32 v{tb+2}, v{tb+2}, v24
    v_mul_f32 v{tb+3}, v{tb+3}, v24
    v_mul_f32 v{tb+4}, v{tb+4}, v24
    v_mul_f32 v{tb+5}, v{tb+5}, v24
    v_cvt_pk_bf16_f32 v{d+2*et}, v{tb+2}, v{tb+3}
    v_cvt_pk_bf16_f32 v{d+2*et+1}, v{tb+4}, v{tb+5}
""")
                a(f"""
    s_nop 1
    v_permlane16_swap_b32 v{d}, v{d+2}
    v_permlane16_swap_b32 v{d+1}, v{d+3}
    buffer_store_dwordx4 v[{d}:{d+3}], v19, s[{S_WS}:{S_WS+3}], s{E_T} offen {STF}
""")
    a("s_waitcnt vmcnt(0)")
    stamp(a, 5)
    ht_store(a, 3, S_WS, [(2, 0), (SW, 4)], 86)
    stamp_dump(a, 6, SW, 0, P_WS, P_WS + 1)
    a.label(f"{name}_done")
    a("s_endpgm")
```

```python
from gen_common import *
import os

ST2 = 32768
NST2 = 4
K2_LDS = ST2 * NST2
K2_THREADS = 256
ACCB, ACCA = 96, 160
NC = int(os.environ.get("K2_NC", "39"))
def acc2(base, tm, tn): return base + (tm * 4 + tn) * 4

def gen_k2(a: Asm, name="k2_kernel"):
    a(f""".globl {name}
.p2align 8
.type {name},@function""")
    a.label(name)
    a(f"""
    s_cmp_ge_u32 s2, 256
    s_cbranch_scc1 {name}_done
    s_load_dwordx2 s[12:13], s[0:1], 16     ; wo
    s_load_dwordx2 s[14:15], s[0:1], 48     ; w_down
    s_load_dwordx4 s[28:31], s[0:1], 64
    s_load_dwordx2 s[32:33], s[0:1], 80     ; ws
    v_and_b32 v1, 63, v0
    v_lshrrev_b32 v2, 6, v0
    s_nop 0
    v_readfirstlane_b32 s40, v2
    s_and_b32 s58, s2, 7                    ; x
    s_lshr_b32 s59, s2, 3                   ; r
    s_lshr_b32 s38, s58, 1
    s_lshl_b32 s38, s38, 2
    s_and_b32 s60, s59, 3
    s_add_u32 s38, s38, s60                 ; mt
    s_and_b32 s39, s58, 1
    s_lshl_b32 s39, s39, 2
    s_lshr_b32 s60, s59, 2
    s_and_b32 s60, s60, 3
    s_add_u32 s39, s39, s60                 ; nt
    s_lshr_b32 s44, s59, 4
    s_xor_b32 s44, s44, 1
    s_lshr_b32 s41, s40, 1                  ; wm
    s_and_b32 s42, s40, 1                   ; wn
    v_lshrrev_b32 v2, 4, v1                 ; g
    v_and_b32 v3, 3, v1                     ; q
    v_lshrrev_b32 v4, 2, v1
    v_and_b32 v4, 3, v4                     ; r
    v_and_b32 v5, 15, v1
    v_lshrrev_b32 v6, 3, v1
    v_and_b32 v7, 7, v1
    v_xor_b32 v7, v7, v2
    v_xor_b32 v28, 4, v7
    v_lshlrev_b32 v7, 4, v7
    v_lshlrev_b32 v28, 4, v28
    v_mul_u32_u24 v6, {AH_LD}, v6
    s_lshl_b32 s58, s38, 7
    s_lshl_b32 s59, s40, 5
    s_add_u32 s58, s58, s59
    s_mul_i32 s58, s58, {AH_LD}             ; (128mt+32w)*ld
    v_add_u32 v6, s58, v6
    v_add_u32 v8, v7, v6
    v_add_u32 v9, v28, v6
    v_add_u32 v9, {8*AH_LD}, v9
    v_add_u32 v10, {16*AH_LD}, v8
    v_add_u32 v11, {16*AH_LD}, v9
    s_lshl_b32 s50, s40, 12
    s_add_u32 s52, s50, 16384
    v_lshlrev_b32 v6, 1, v2
    v_xor_b32 v6, v6, v5
    v_xor_b32 v7, 8, v6
    v_lshlrev_b32 v6, 4, v6
    v_lshlrev_b32 v7, 4, v7
    v_lshlrev_b32 v28, 11, v2               ; (l>>4)*2048
    s_lshl_b32 s58, s40, 15                 ; w*16 rows*2048
    s_lshl_b32 s59, s39, 8                  ; nt*256
    s_add_u32 s58, s58, s59
    v_add_u32 v28, s58, v28
    v_add_u32 v12, v6, v28
    v_add_u32 v13, 0x2000, v12
    v_add_u32 v14, v7, v28
    v_add_u32 v14, 0x4000, v14
    v_add_u32 v15, 0x2000, v14
    s_waitcnt lgkmcnt(0)
    s_mov_b32 s4, s32
    s_mov_b32 s5, s33
    s_mov_b32 s6, {AH_BYTES}
    s_mov_b32 s7, 0x00020000
    s_cmp_eq_u32 s44, 0
    s_cselect_b32 s8, s12, s14
    s_cselect_b32 s9, s13, s15
    s_mov_b32 s61, 2097152
    s_mov_b32 s62, 7340032
    s_cselect_b32 s10, s61, s62
    s_mov_b32 s11, 0x00020000
    s_cselect_b32 s47, 0, {NC}              ; tau
    s_cselect_b32 s45, 0, {NC*128}
    s_cselect_b32 s46, 0, {(NC-16)*131072}
    s_mov_b32 s55, 0
    s_mov_b32 s56, 0
    """)
    stamp(a, 0)

    def dma_instr(n):
        if n < 4:
            return [f"s_add_u32 m0, s55, s50", f"s_add_u32 m0, m0, {1024*n}" if n else "s_nop 0", "s_nop 0",
                    f"buffer_load_dwordx4 v{8+n}, s[4:7], s45 offen lds"]
        return [f"s_add_u32 m0, s55, s52", f"s_add_u32 m0, m0, {1024*(n-4)}" if n > 4 else "s_nop 0", "s_nop 0",
                f"buffer_load_dwordx4 v{8+n}, s[8:11], s46 offen lds"]
    def dma_advance():
        return ["s_add_u32 s45, s45, 128", "s_add_u32 s46, s46, 131072", "s_add_u32 s47, s47, 1",
                "s_cmp_eq_u32 s47, 16", "s_cselect_b32 s8, s14, s8", "s_cselect_b32 s9, s15, s9",
                "s_cselect_b32 s10, s62, s10", "s_cselect_b32 s46, 0, s46",
                f"s_add_u32 s55, s55, {ST2}", f"s_cmp_eq_u32 s55, {ST2*NST2}", "s_cselect_b32 s55, 0, s55"]
    for st in range(3):
        for n in range(8):
            a("\n".join(dma_instr(n)))
        a("\n".join(dma_advance()))
    a(f"""
    s_mov_b32 s16, s28
    s_mov_b32 s17, s29
    s_mov_b32 s18, 4194304
    s_mov_b32 s19, 0x00020000
    s_mov_b32 s20, s32
    s_mov_b32 s21, s33
    s_mov_b32 s22, {WS_USED}
    s_mov_b32 s23, 0x00020000
    s_mov_b32 s24, s30
    s_mov_b32 s25, s31
    s_mov_b32 s26, 256
    s_mov_b32 s27, 0x00020000
    """)
    ht_store(a, 4, 20, [(2, 255), (40, 0)], 86)
    a(f"""
    v_lshrrev_b32 v6, 1, v5
    v_xor_b32 v6, v6, v2
    v_xor_b32 v7, 4, v6
    v_lshlrev_b32 v6, 4, v6
    v_lshlrev_b32 v7, 4, v7
    v_lshlrev_b32 v16, 7, v5
    s_lshl_b32 s58, s41, 13
    v_add_u32 v16, s58, v16
    v_add_u32 v17, v16, v7
    v_add_u32 v16, v16, v6
    v_and_b32 v6, 1, v2
    v_lshlrev_b32 v6, 2, v6
    v_or_b32 v6, v6, v4                     ; s'
    v_lshlrev_b32 v7, 3, v2
    v_add_u32 v7, v7, v4
    v_lshlrev_b32 v7, 8, v7
    v_lshrrev_b32 v28, 1, v3
    v_lshlrev_b32 v28, 4, v28
    v_and_b32 v29, 1, v3
    v_lshlrev_b32 v29, 3, v29
    v_add_u32 v7, v7, v28
    v_add_u32 v7, v7, v29
    v_add_u32 v7, 0x4000, v7
    s_lshl_b32 s58, s42, 2
    """)
    for tn in range(4):
        a(f"""
    s_add_u32 s59, s58, {tn}
    v_xor_b32 v28, s59, v6
    v_lshlrev_b32 v28, 5, v28
    v_add_u32 v{20+tn}, v7, v28
""")
    def set_addrs():
        return ["v_add_u32 v18, s56, v16", "v_add_u32 v19, s56, v17"] + [f"v_add_u32 v{24+t}, s56, v{20+t}" for t in range(4)] + \
               [f"s_add_u32 s56, s56, {ST2}", f"s_cmp_eq_u32 s56, {ST2*NST2}", "s_cselect_b32 s56, 0, s56"]
    def reads(hk):
        A = 32 + 32 * hk; B = A + 16
        L = []
        for i in range(4):
            L.append(f"ds_read_b128 v[{A+4*i}:{A+4*i+3}], v{18+hk} offset:{2048*i}")
            L.append(f"ds_read_b64_tr_b16 v[{B+4*i}:{B+4*i+1}], v{24+i} offset:{8192*hk}")
            L.append(f"ds_read_b64_tr_b16 v[{B+4*i+2}:{B+4*i+3}], v{24+i} offset:{8192*hk+1024}")
        return L
    for r in range(ACCB, ACCA + 64):
        a(f"v_mov_b32 v{r}, 0")
    a("s_waitcnt vmcnt(16)\ns_barrier")
    a("\n".join(set_addrs()))
    a("\n".join(reads(0)))

    def sub(accb, hk, fill):
        A = 32 + 32 * hk; B = A + 16
        m = 0
        for tm in range(4):
            for tn in range(4):
                c = acc2(accb, tm, tn)
                a(f"v_mfma_f32_16x16x32_bf16 v[{c}:{c+3}], v[{B+4*tn}:{B+4*tn+3}], v[{A+4*tm}:{A+4*tm+3}], v[{c}:{c+3}]")
                if m < len(fill):
                    a("\n".join(fill[m]))
                m += 1
    def step(accb, dma, vm, barrier, pre):
        a("s_waitcnt lgkmcnt(0)")
        if vm is not None:
            a(f"s_waitcnt vmcnt({vm})")
        if barrier:
            a("s_barrier")
        mode = os.environ.get("K2_SCHED", "1")
        R = reads(1)
        if mode == "0":
            fill = [[x] for x in R]
            if dma:
                fill += [dma_instr(n) for n in range(4)]
        else:
            fill = [[x] for x in R] + [[] for _ in range(4)]
            if dma:
                for n in range(8):
                    fill[2 * n] = fill[2 * n] + dma_instr(n)
                fill[15] = fill[15] + dma_advance()
        sub(accb, 0, fill)
        a("s_waitcnt lgkmcnt(0)")
        fill = []
        if pre:
            a("\n".join(set_addrs()))
            fill += [[x] for x in reads(0)]
        if dma and mode == "0":
            d = [dma_instr(n) for n in range(4, 8)]
            d[3] = d[3] + dma_advance()
            fill += d
        sub(accb, 1, fill)

    stamp(a, 1)
    a(f"""
    s_cmp_eq_u32 s44, 1
    s_mov_b32 s57, {72-NC-3}
    s_cbranch_scc1 {name}_phB
    s_mov_b32 s57, 16
""")
    a.label(f"{name}_loopA")
    step(ACCA, True, 8, True, True)
    a(f"""
    s_sub_u32 s57, s57, 1
    s_cmp_lg_u32 s57, 0
    s_cbranch_scc1 {name}_loopA
    s_mov_b32 s57, {NC-16-3}
""")
    a.label(f"{name}_phB")
    step(ACCB, True, 8, True, True)
    a(f"""
    s_sub_u32 s57, s57, 1
    s_cmp_lg_u32 s57, 0
    s_cbranch_scc1 {name}_phB
""")
    step(ACCB, False, 8, True, True)
    step(ACCB, False, 0, True, True)
    step(ACCB, False, None, False, False)
    stamp(a, 2)
    a(f"""
    v_lshlrev_b32 v22, 4, v1                ; lane*16
    s_lshl_b32 s63, s38, 3
    s_add_u32 s63, s63, s39
    s_lshl_b32 s64, s63, 16                 ; tile*65536
    s_lshl_b32 s59, s40, 14
    s_add_u32 s64, s64, s59
    s_add_u32 s64, s64, {P2_OFF}
    s_lshr_b32 s65, s63, 5
    s_lshl_b32 s65, s65, 2
    s_and_b32 s66, s63, 31
    s_lshl_b32 s66, 1, s66
    v_mov_b32 v25, 0
    s_cmp_eq_u32 s44, 0
    s_cbranch_scc1 {name}_cons
""")
    for q in range(16):
        c = ACCB + 4 * q
        a(f"buffer_store_dwordx4 v[{c}:{c+3}], v22, s[20:23], s64 offen offset:{1024*(q%4)} sc1")
        if q % 4 == 3:
            a("s_add_u32 s64, s64, 4096")
    a(f"""
    s_waitcnt vmcnt(0)
    s_barrier
    s_cmp_lg_u32 s40, 0
    s_cbranch_scc1 {name}_done
    v_mov_b32 v24, s66
    s_mov_b64 exec, 1
    buffer_atomic_or v24, v25, s[24:27], s65 offen sc1
    s_branch {name}_done
""")
    a.label(f"{name}_cons")
    lp = a.new("poll")
    a(f"""
    s_lshl_b32 s58, s38, 7
    s_lshl_b32 s59, s41, 6
    s_add_u32 s58, s58, s59
    s_lshl_b32 s59, s58, 2
    s_add_u32 s59, s59, {G_OFF}
    v_lshlrev_b32 v26, 2, v5
    buffer_load_dword v8, v26, s[20:23], s59 offen
    buffer_load_dword v9, v26, s[20:23], s59 offen offset:64
    buffer_load_dword v10, v26, s[20:23], s59 offen offset:128
    buffer_load_dword v11, v26, s[20:23], s59 offen offset:192
    s_lshl_b32 s67, s58, 11                 ; token*2048
    s_lshl_b32 s59, s39, 8
    s_add_u32 s67, s67, s59
    s_lshl_b32 s59, s42, 7
    s_add_u32 s67, s67, s59
    v_lshlrev_b32 v26, 11, v5
    v_and_b32 v27, 1, v2
    v_lshlrev_b32 v27, 5, v27
    v_add_u32 v26, v26, v27
    v_lshrrev_b32 v27, 1, v2
    v_lshlrev_b32 v27, 4, v27
    v_add_u32 v26, v26, v27                 ; (l&15)*2048 + 32(g&1) + 16(g>>1)
{lp}:
    buffer_load_dword v24, v25, s[24:27], s65 offen sc1
    s_waitcnt vmcnt(0)
    v_readfirstlane_b32 s58, v24
    s_and_b32 s58, s58, s66
    s_cbranch_scc1 {lp}_ok
    s_sleep 2
    s_branch {lp}
{lp}_ok:
""")
    stamp(a, 3)
    for q in range(16):
        a(f"buffer_load_dwordx4 v[{32+4*q}:{35+4*q}], v22, s[20:23], s64 offen offset:{1024*(q%4)} sc1")
        if q % 4 == 3:
            a("s_add_u32 s64, s64, 4096")
    for tm in range(4):
        a(f"""
    v_sub_f32 v{12+tm}, 1.0, v{8+tm}
    v_cvt_pk_bf16_f32 v{12+tm}, v{12+tm}, v{12+tm}
    v_lshlrev_b32 v{12+tm}, 16, v{12+tm}
""")
    for tm in range(4):
        for tn in range(4):
            ca = acc2(ACCA, tm, tn)
            a(f"""
    v_cvt_pk_bf16_f32 v28, v{ca}, v{ca+1}
    v_cvt_pk_bf16_f32 v29, v{ca+2}, v{ca+3}
    v_lshlrev_b32 v{ca}, 16, v28
    v_and_b32 v{ca+1}, 0xffff0000, v28
    v_lshlrev_b32 v{ca+2}, 16, v29
    v_and_b32 v{ca+3}, 0xffff0000, v29
    v_mul_f32 v{ca}, v{8+tm}, v{ca}
    v_mul_f32 v{ca+1}, v{8+tm}, v{ca+1}
    v_mul_f32 v{ca+2}, v{8+tm}, v{ca+2}
    v_mul_f32 v{ca+3}, v{8+tm}, v{ca+3}
    v_cvt_pk_bf16_f32 v28, v{ca}, v{ca+1}
    v_cvt_pk_bf16_f32 v29, v{ca+2}, v{ca+3}
    v_lshlrev_b32 v{ca}, 16, v28
    v_and_b32 v{ca+1}, 0xffff0000, v28
    v_lshlrev_b32 v{ca+2}, 16, v29
    v_and_b32 v{ca+3}, 0xffff0000, v29
""")
    stamp(a, 4)
    for tm in range(4):
        if tm:
            a("s_add_u32 s67, s67, 32768")
        for tn in range(4):
            q = tm * 4 + tn
            cb = acc2(ACCB, tm, tn); cp = 32 + 4 * q; ca = acc2(ACCA, tm, tn)
            dd = 224 + 4 * (q // 2 % 4)
            a(f"""
    s_waitcnt vmcnt({15 - q + (q // 2)})
    v_add_f32 v{cb}, v{cb}, v{cp}
    v_add_f32 v{cb+1}, v{cb+1}, v{cp+1}
    v_add_f32 v{cb+2}, v{cb+2}, v{cp+2}
    v_add_f32 v{cb+3}, v{cb+3}, v{cp+3}
    v_cvt_pk_bf16_f32 v28, v{cb}, v{cb+1}
    v_cvt_pk_bf16_f32 v29, v{cb+2}, v{cb+3}
    v_lshlrev_b32 v{cb}, 16, v28
    v_and_b32 v{cb+1}, 0xffff0000, v28
    v_lshlrev_b32 v{cb+2}, 16, v29
    v_and_b32 v{cb+3}, 0xffff0000, v29
    v_mul_f32 v{cb}, v{12+tm}, v{cb}
    v_mul_f32 v{cb+1}, v{12+tm}, v{cb+1}
    v_mul_f32 v{cb+2}, v{12+tm}, v{cb+2}
    v_mul_f32 v{cb+3}, v{12+tm}, v{cb+3}
    v_cvt_pk_bf16_f32 v28, v{cb}, v{cb+1}
    v_cvt_pk_bf16_f32 v29, v{cb+2}, v{cb+3}
    v_lshlrev_b32 v{cb}, 16, v28
    v_and_b32 v{cb+1}, 0xffff0000, v28
    v_lshlrev_b32 v{cb+2}, 16, v29
    v_and_b32 v{cb+3}, 0xffff0000, v29
    v_add_f32 v{cb}, v{cb}, v{ca}
    v_add_f32 v{cb+1}, v{cb+1}, v{ca+1}
    v_add_f32 v{cb+2}, v{cb+2}, v{ca+2}
    v_add_f32 v{cb+3}, v{cb+3}, v{ca+3}
    v_cvt_pk_bf16_f32 v{dd+2*(tn&1)}, v{cb}, v{cb+1}
    v_cvt_pk_bf16_f32 v{dd+2*(tn&1)+1}, v{cb+2}, v{cb+3}
""")
            if tn & 1:
                a(f"""
    s_nop 1
    v_permlane16_swap_b32 v{dd}, v{dd+2}
    v_permlane16_swap_b32 v{dd+1}, v{dd+3}
    buffer_store_dwordx4 v[{dd}:{dd+3}], v26, s[16:19], s67 offen offset:{32*(tn-1)}
""")
    a("s_waitcnt vmcnt(0)")
    stamp(a, 5)
    if HT:
        lab = a.new("htd")
        a(f"""
    s_cmp_lg_u32 s2, 255
    s_cbranch_scc1 {lab}
    s_cmp_lg_u32 s40, 0
    s_cbranch_scc1 {lab}
    s_memrealtime s[86:87]
    v_lshlrev_b32 v30, 2, v1
    v_add_u32 v31, {TS_BASE}, v30
    buffer_load_dword v28, v31, s[20:23], 0 offen sc1
    v_mov_b32 v31, {TS_BASE}
    buffer_load_dword v29, v31, s[20:23], 0 offen sc1
    s_waitcnt vmcnt(0) lgkmcnt(0)
    v_mov_b32 v27, s86
    v_cmp_eq_u32 vcc, 5, v1
    s_nop 1
    v_cndmask_b32 v28, v28, v27, vcc
    v_sub_u32 v28, v28, v29
    v_add_u32 v30, 32, v30
    s_mov_b64 exec, 0x3f
    buffer_store_dword v28, v30, s[24:27], 0 offen
    s_waitcnt vmcnt(0)
{lab}:
""")
    stamp_dump(a, 6, 40, 1 << 20, 32, 33)
    a.label(f"{name}_done")
    a("s_endpgm")
```
